```python
import torch

def _softmax(x, axis=-1):
    return torch.softmax(x, dim=axis)

def _gelu(x):
    return torch.nn.functional.gelu(x, approximate='tanh')

def _silu(x):
    return torch.nn.functional.silu(x)

def _sigmoid(x):
    return torch.sigmoid(x)

def _layernorm(x, axis=-1, eps=1e-05):
    m = x.mean(dim=axis, keepdim=True)
    v = x.var(dim=axis, keepdim=True, unbiased=False)
    return (x - m) / torch.sqrt(v + eps)

def _scatter_add(tgt, idx, src, axis=0):
    return tgt.clone().index_add_(axis, idx, src)

def _segment_sum(src, seg, n):
    out = torch.zeros((n,) + src.shape[1:], dtype=src.dtype)
    return out.index_add_(0, seg, src)

def _pad(x, pw):
    flat = tuple((v for pair in reversed(pw) for v in pair))
    return torch.nn.functional.pad(x, flat)
kernel_name = 'standalone__window_attn_davit__vision'

def setup_inputs():

    _w = lambda a: (lambda t: t.to(torch.bfloat16) if t.is_floating_point() else t)(torch.as_tensor(a))
    HW = 512
    C0 = 192
    ws = 7
    nh = 4
    H = W = max(HW // ws * ws, ws)
    C = max(C0 // nh * nh, nh)
    k = 3
    return {'x': _w((lambda *s: torch.randn(*s, dtype=torch.bfloat16) * 1.6)(1, H, W, C)), 'dw_pe': _w((lambda *s: torch.randn(*s, dtype=torch.bfloat16) * 1.6)(k, k, C) * 0.1), 'w_qkv': _w((lambda *s: torch.randn(*s, dtype=torch.bfloat16) * 1.6)(C, 3 * C) * C ** (-0.5)), 'w_o': _w((lambda *s: torch.randn(*s, dtype=torch.bfloat16) * 0.4)(C, C) * C ** (-0.5))}

def reference(x, dw_pe, w_qkv, w_o):
    B, H, W, C = x.shape
    ws = 7
    nh = 4
    dh = C // nh
    kk = dw_pe.shape[0]
    pad = kk // 2
    xp = _pad(x, ((0, 0), (pad, pad), (pad, pad), (0, 0)))
    pe = torch.zeros_like(x)
    for i in range(kk):
        for j in range(kk):
            pe = pe + xp[:, i:i + H, j:j + W, :] * dw_pe[i, j][None, None, None, :]
    x0 = x + pe
    h = _layernorm(x0, axis=-1)
    hw = h.reshape(B, H // ws, ws, W // ws, ws, C)
    hw = (lambda x, *d: x.permute(*d))(hw, 0, 1, 3, 2, 4, 5)
    hw = hw.reshape(-1, ws * ws, C)
    qkv = (hw @ w_qkv).reshape(-1, ws * ws, 3, nh, dh)
    q = qkv[:, :, 0].clone()
    k = qkv[:, :, 1].clone()
    v = qkv[:, :, 2].clone()
    scale = dh ** (-0.5)
    attn = torch.einsum('wnhd,wmhd->whnm', q, k) * scale
    attn = _softmax(attn, axis=-1)
    out = torch.einsum('whnm,wmhd->wnhd', attn, v)
    out = out.reshape(-1, ws * ws, C) @ w_o
    out = out.reshape(B, H // ws, W // ws, ws, ws, C)
    out = (lambda x, *d: x.permute(*d))(out, 0, 1, 3, 2, 4, 5)
    out = out.reshape(B, H, W, C)
    return x0 + out
```

```python
import re

TRANS = ("v_exp_f32", "v_log_f32", "v_rcp_f32", "v_rsq_f32", "v_sqrt_f32", "v_rcp_iflag_f32")
_cache = {}


def regs(tok):
    tok = tok.strip()
    tok = tok.lstrip("-")
    if tok.startswith("|") and tok.endswith("|"):
        tok = tok[1:-1]
    m = re.fullmatch(r"abs\((.*)\)", tok)
    if m:
        tok = m.group(1)
    m = re.fullmatch(r"([vas])(\d+)", tok)
    if m:
        return [(m.group(1), int(m.group(2)))]
    m = re.fullmatch(r"([vas])\[(\d+):(\d+)\]", tok)
    if m:
        return [(m.group(1), i) for i in range(int(m.group(2)), int(m.group(3)) + 1)]
    if tok == "vcc":
        return [("s", "vcc")]
    if tok == "exec":
        return [("s", "exec")]
    if tok == "m0":
        return [("s", "m0")]
    return []


class I:
    pass


def parse(line):
    if line in _cache:
        return _cache[line]
    s = line.split(";")[0].strip()
    i = I()
    i.text = s
    i.kind = "none"
    i.defs, i.uses, i.cuse = set(), set(), set()
    i.states = 1
    if not s or s.endswith(":") or s.startswith("."):
        i.states = 0
        _cache[line] = i
        return i
    p = s.split(None, 1)
    mn = p[0]
    i.mn = mn
    ops = []
    if len(p) > 1:
        ops = [o.strip() for o in p[1].split(",")]
        ops[-1] = ops[-1].split()[0] if ops[-1] else ops[-1]
    R = [regs(o) for o in ops]
    flat = lambda l: {x for r in l for x in r}
    if mn.startswith("v_mfma"):
        i.kind = "mfma"
        i.defs, i.uses, i.cuse = flat(R[:1]), flat(R[1:3]), flat(R[3:4])
    elif mn.startswith("v_smfmac"):
        i.kind = "mfma"
        i.defs, i.uses, i.cuse = flat(R[:1]), flat(R[1:4]), flat(R[:1])
    elif mn.startswith("v_permlane"):
        i.kind = "valu"
        i.defs, i.uses = flat(R), flat(R)
    elif mn.startswith("v_add_co") or mn.startswith("v_addc_co") or mn.startswith("v_sub_co"):
        i.kind = "valu"
        i.defs, i.uses = flat(R[:2]), flat(R[2:])
    elif mn.startswith("v_"):
        i.kind = "valu"
        i.defs, i.uses = flat(R[:1]), flat(R[1:])
        if mn.startswith("v_fmac") or mn.startswith("v_writelane") or "d16" in mn:
            i.uses |= i.defs
    elif mn.startswith("ds_read"):
        i.kind = "dsr"
        i.defs, i.uses = flat(R[:1]), flat(R[1:])
    elif mn.startswith("ds_bpermute") or mn.startswith("ds_swizzle"):
        i.kind = "dsr"
        i.defs, i.uses = flat(R[:1]), flat(R[1:])
    elif mn.startswith("ds_write"):
        i.kind = "dsw"
        i.uses = flat(R)
    elif mn.startswith("buffer_load") or mn.startswith("global_load"):
        if re.search(r"\blds\b", s) or "_lds_" in mn:
            i.kind = "dma"
            i.uses = flat(R) | {("s", "m0")}
        else:
            i.kind = "vml"
            i.defs, i.uses = flat(R[:1]), flat(R[1:])
    elif mn.startswith("buffer_store") or mn.startswith("global_store"):
        i.kind = "vms"
        i.uses = flat(R)
        i.data = set(R[0]) if mn.startswith("buffer") else set(R[1])
        i.wide = mn.endswith("x3") or mn.endswith("x4")
    elif mn == "s_nop":
        i.kind = "nop"
        i.states = int(ops[0], 0) + 1
    elif mn == "s_waitcnt":
        i.kind = "wait"
        m = re.search(r"vmcnt\((\d+)\)", s)
        i.vm = int(m.group(1)) if m else None
        m = re.search(r"lgkmcnt\((\d+)\)", s)
        i.lg = int(m.group(1)) if m else None
    elif mn.startswith("s_load") or mn.startswith("s_memtime") or mn.startswith("s_memrealtime"):
        i.kind = "smem"
        i.defs, i.uses = flat(R[:1]), flat(R[1:])
    elif mn.startswith("s_"):
        i.kind = "salu"
        if mn.startswith("s_cmp") or mn.startswith("s_cbranch") or mn in ("s_barrier", "s_branch", "s_endpgm", "s_setprio", "s_bitcmp1_b32", "s_bitcmp0_b32"):
            i.uses = flat(R)
        else:
            i.defs, i.uses = flat(R[:1]), flat(R[1:])
            if "saveexec" in mn:
                i.defs |= {("s", "exec")}
    else:
        raise ValueError("unknown instruction: " + line)
    _cache[line] = i
    return i


def isv(x):
    return x[0] in ("v", "a")


def required(p, c):
    r = 0
    if p.kind == "mfma":
        if c.kind == "mfma":
            if p.defs & c.uses:
                r = max(r, 8)
            if p.defs & c.cuse and (p.defs != c.cuse or p.mn != c.mn):
                r = max(r, 6)
            if p.defs & c.defs and p.defs != c.cuse and not (p.defs & c.cuse):
                r = max(r, 0)
        elif c.kind in ("valu", "dsr", "dsw", "vml", "vms", "dma"):
            if p.defs & (c.uses | c.defs):
                r = max(r, 8)
            if c.kind == "valu" and (p.cuse & c.defs):
                r = max(r, 3)
    elif p.kind == "valu":
        vd = {x for x in p.defs if isv(x)}
        sd = {x for x in p.defs if not isv(x)}
        if c.kind == "mfma" and vd & (c.uses | c.cuse):
            r = max(r, 2)
        if c.kind == "valu":
            if p.mn.replace("_e32", "").replace("_e64", "") in TRANS and vd & c.uses:
                r = max(r, 1)
            if c.mn.startswith("v_permlane") and vd & c.uses:
                r = max(r, 2)
            if "dpp" in c.text and vd & c.uses:
                r = max(r, 2)
            if (c.mn.startswith("v_readlane") or c.mn.startswith("v_readfirstlane")) and vd & c.uses:
                r = max(r, 1)
            if sd & c.uses:
                r = max(r, 4 if c.mn.startswith("v_readlane") or c.mn.startswith("v_writelane") else 2)
            if "sdwa" in p.text and vd & (c.uses | c.defs):
                r = max(r, 1)
        if c.kind in ("vml", "vms", "dma") and sd & c.uses:
            r = max(r, 5)
        if c.kind == "salu" and sd & c.uses:
            r = max(r, 2)
    elif p.kind == "salu":
        if ("s", "m0") in p.defs and c.kind == "dma":
            r = max(r, 1)
    elif p.kind == "vms":
        if p.wide and c.kind in ("valu", "mfma", "dsr", "vml") and p.data & c.defs:
            r = max(r, 2)
    return r


def flatten(path):
    seq = []
    for b in path:
        for k, l in enumerate(b):
            i = parse(l)
            if i.states:
                seq.append((b, k, i))
    return seq


def first_violation(path):
    seq = flatten(path)
    for j, (b, k, c) in enumerate(seq):
        if c.kind in ("nop", "wait", "none"):
            continue
        for i in range(j - 1, max(-1, j - 10), -1):
            p = seq[i][2]
            r = required(p, c)
            if not r:
                continue
            t = 4 * p.states
            pipe = 16 if p.kind == "mfma" else None
            for m in range(i + 1, j):
                x = seq[m][2]
                if x.kind == "mfma":
                    if pipe is not None:
                        t = max(t, pipe)
                    pipe = t + 16
                t += 4 * x.states
            if c.kind == "mfma" and pipe is not None:
                t = max(t, pipe)
            need = 4 * (r + 1)
            if t < need:
                return b, k, (need - t + 3) // 4, p, c
    return None


def fix_hazards(paths, verbose=False):
    n = 0
    changed = True
    while changed:
        changed = False
        for path in paths:
            while True:
                v = first_violation(path)
                if v is None:
                    break
                b, k, miss, p, c = v
                b.insert(k, f"  s_nop {miss - 1}")
                if verbose:
                    print("  nop", miss, "between", p.text, "|", c.text)
                n += 1
                changed = True
    return n


def check_waits(path):
    dsq, vmq = [], []
    smem = set()
    errs = []
    for b, k, c in flatten(path):
        if c.kind == "wait":
            if c.lg is not None:
                if c.lg == 0:
                    smem = set()
                del dsq[:max(0, len(dsq) - c.lg)]
            if c.vm is not None:
                del vmq[:max(0, len(vmq) - c.vm)]
            continue
        touched = c.defs | c.uses | c.cuse
        for q, nm in ((dsq, "lgkm"), (vmq, "vm")):
            for x in q:
                if x.defs & touched:
                    errs.append(f"{nm} pending: {x.text}  ->  {c.text}")
        if smem & touched:
            errs.append(f"smem pending -> {c.text}")
        if c.kind in ("dsr", "dsw"):
            dsq.append(c)
            if len(dsq) > 15 + 48:
                pass
        elif c.kind in ("vml", "vms", "dma"):
            vmq.append(c)
            if len(vmq) > 63:
                errs.append("more than 63 vmem ops outstanding at " + c.text)
        elif c.kind == "smem":
            smem |= c.defs
    return errs
```

```python
import random

MFMA_KINDS = ("m32", "m16", "sm")
VALU_KINDS = ("valu", "trans", "perm")
DS_KINDS = ("dsr", "dsw")
VM_KINDS = ("vml", "vms", "dma")
SC_KINDS = ("salu", "bar", "wait", "nop")


class Val:
    def __init__(self, name, n=1, cls="v", pin=None, live_in=False, live_out=False, ready=0, persistent=False):
        self.name, self.n, self.cls, self.pin = name, n, cls, pin
        self.live_in, self.live_out, self.ready, self.persistent = live_in, live_out, ready, persistent
        self.phys = pin

    def __getitem__(self, k):
        if isinstance(k, slice):
            a = k.start or 0
            b = self.n if k.stop is None else k.stop
            return Ref(self, a, b - a)
        return Ref(self, k, 1)

    def all(self):
        return Ref(self, 0, self.n)

    def __repr__(self):
        return f"<{self.name}:{self.n}>"


class Ref:
    def __init__(self, val, off, n, span=None):
        self.val, self.off, self.n, self.span = val, off, n, span or n

    def wide(self, span):
        return Ref(self.val, self.off, self.n, span)

    def keys(self):
        return [(self.val, self.off + i) for i in range(self.n)]

    def text(self):
        p = self.val.phys + self.off
        c = self.val.cls
        return f"{c}{p}" if self.span == 1 else f"{c}[{p}:{p + self.span - 1}]"


def R(x):
    return x.all() if isinstance(x, Val) else x


class Op:
    def __init__(self, kind, fmt, args=(), defs=(), uses=(), cuse=None, slots=1, occ=0, tag=""):
        self.kind, self.fmt, self.args = kind, fmt, [R(a) if isinstance(a, (Val, Ref)) else a for a in args]
        self.defs = [R(d) for d in defs]
        self.uses = [R(u) for u in uses]
        self.cuse = R(cuse) if cuse is not None else None
        self.slots, self.occ, self.tag = slots, occ, tag
        self.preds = []
        self.succs = []
        self.window = None
        self.not_before = None
        self.t = None
        self.idx = None
        self.dl = None
        self.bonus = 0

    def text(self):
        return self.fmt.format(*[a.text() if isinstance(a, Ref) else a for a in self.args])


class Block:
    LDS_LAT = 72
    VM_LAT = 700

    def __init__(self, name):
        self.name = name
        self.ops = []
        self.last_w = {}
        self.readers = {}
        self.last_salu = None
        self.vals = []
        self.out = None

    def val(self, name, n=1, cls="v", **kw):
        v = Val(name, n, cls, **kw)
        self.vals.append(v)
        return v

    def dep(self, a, b, lat=0, mode=""):
        if a is b:
            return
        b.preds.append((a, lat, mode))
        a.succs.append((b, lat, mode))

    @staticmethod
    def cost(op):
        k = op.kind
        if k in MFMA_KINDS:
            return 4
        if k == "valu":
            return 4
        if k in ("trans", "perm"):
            return 8
        if k in DS_KINDS or k in VM_KINDS:
            return 4 * op.slots
        return 4

    def _raw(self, p, c, as_c):
        pk, ck = p.kind, c.kind
        if pk in MFMA_KINDS:
            if as_c:
                return self.dep(p, c, 4 if pk == ck else 28)
            return self.dep(p, c, 36)
        if pk == "dsr":
            return self.dep(p, c, 0, "lgkm")
        if pk == "vml":
            return self.dep(p, c, 0, "vm")
        if pk in VALU_KINDS:
            lat = self.cost(p)
            if ck in MFMA_KINDS or ck == "perm":
                lat += 8
            elif pk == "trans":
                lat += 4
            return self.dep(p, c, lat)
        return self.dep(p, c, 4)

    def add(self, op):
        self.ops.append(op)
        for u in op.uses:
            for k in u.keys():
                if k in self.last_w:
                    self._raw(self.last_w[k], op, False)
        if op.cuse is not None:
            for k in op.cuse.keys():
                if k in self.last_w:
                    self._raw(self.last_w[k], op, True)
        allu = list(op.uses) + ([op.cuse] if op.cuse is not None else [])
        for d in op.defs:
            for k in d.keys():
                for r in self.readers.get(k, ()):
                    self.dep(r, op, 4)
                w = self.last_w.get(k)
                if w is not None:
                    if w.kind in MFMA_KINDS and op.kind not in MFMA_KINDS:
                        self.dep(w, op, 36)
                    elif w.kind == "dsr":
                        self.dep(w, op, 0, "lgkm")
                    elif w.kind == "vml":
                        self.dep(w, op, 0, "vm")
                    else:
                        self.dep(w, op, 4)
        for u in allu:
            for k in u.keys():
                self.readers.setdefault(k, []).append(op)
        for d in op.defs:
            for k in d.keys():
                self.last_w[k] = op
                self.readers[k] = []
        if op.kind == "salu":
            if self.last_salu is not None:
                self.dep(self.last_salu, op, 4)
            self.last_salu = op
        return op

    def mfma(self, kind, d, a, b, c=None, idx=None, tag=""):
        d, a, b = R(d), R(a), R(b)
        if kind == "sm":
            return self.add(Op("sm", "v_smfmac_f32_16x16x64_bf16 {0}, {1}, {2}, {3}", [d, a, b, idx], [d], [a, b, idx], cuse=d, tag=tag))
        nm = "v_mfma_f32_16x16x32_bf16" if kind == "m32" else "v_mfma_f32_16x16x16_bf16"
        if c is None:
            return self.add(Op(kind, nm + " {0}, {1}, {2}, 0", [d, a, b], [d], [a, b], tag=tag))
        c = R(c)
        return self.add(Op(kind, nm + " {0}, {1}, {2}, {3}", [d, a, b, c], [d], [a, b], cuse=c, tag=tag))

    def valu(self, fmt, d, *srcs, kind="valu", rmw=False, tag=""):
        uses = [s for s in srcs if isinstance(s, (Val, Ref))]
        if rmw:
            uses = uses + [d]
        defs = [d] if isinstance(d, (Val, Ref)) else []
        return self.add(Op(kind, fmt, [d, *srcs], defs, uses, tag=tag))

    def swap(self, which, a, b, tag=""):
        return self.add(Op("perm", f"v_permlane{which}_swap_b32 {{0}}, {{1}}", [a, b], [a, b], [a, b], tag=tag))

    def dsr(self, mn, d, addr, off="", occ=None, window=10, tag=""):
        d = R(d)
        if occ is None:
            occ = 16 if d.n >= 4 else 8
        if isinstance(off, int):
            assert 0 <= off < 65536, off
            off = f" offset:{off}" if off else ""
        o = self.add(Op("dsr", mn + " {0}, {1}" + off, [d, addr], [d], [addr], slots=1, occ=occ, tag=tag))
        o.window = window
        return o

    def dsw(self, mn, addr, s, off=0, tag=""):
        s = R(s)
        assert 0 <= off < 65536, off
        occ = {1: 16, 2: 28, 3: 40, 4: 52}[s.n]
        return self.add(Op("dsw", mn + " {0}, {1}" + (f" offset:{off}" if off else ""), [addr, s], [], [addr, s], slots=1 + s.n, occ=occ, tag=tag))

    def vml(self, mn, d, addr, srd, soff="0", off=0, extra="", tag=""):
        assert 0 <= off < 4096
        return self.add(Op("vml", f"{mn} {{0}}, {{1}}, {srd}, {soff} offen" + (f" offset:{off}" if off else "") + extra, [d, addr], [d], [addr], slots=2, tag=tag))

    def vms(self, mn, s, addr, srd, soff="0", off=0, extra="", tag=""):
        s = R(s)
        assert 0 <= off < 4096
        return self.add(Op("vms", f"{mn} {{0}}, {{1}}, {srd}, {soff} offen" + (f" offset:{off}" if off else "") + extra, [s, addr], [], [s, addr], slots=1 + s.n, tag=tag))

    def dma(self, addr, srd, soff, off=0, extra="", tag=""):
        assert 0 <= off < 4096
        return self.add(Op("dma", f"buffer_load_dwordx4 {{0}}, {srd}, {soff} offen" + (f" offset:{off}" if off else "") + extra + " lds", [addr], [], [addr], slots=2, tag=tag))

    def salu(self, text, tag=""):
        return self.add(Op("salu", text.replace("{", "{{").replace("}", "}}"), tag=tag))

    def bar(self, tag=""):
        return self.add(Op("bar", "s_barrier", tag=tag))

    def before_bar(self, ops, bar):
        for o in ops:
            mode = "lgkm" if o.kind in DS_KINDS else ("vm" if o.kind in VM_KINDS else "")
            self.dep(o, bar, 4, mode)

    def after(self, first, ops, lat=4, mode=""):
        for o in ops:
            self.dep(first, o, lat, mode)

    def schedule(self, backbone=None, linear=False, vm_pending=0, end_wait=True, verbose=False, throttle=20):
        ops = self.ops
        if linear:
            backbone = list(ops)
        else:
            if backbone is None:
                backbone = [o for o in ops if o.kind in MFMA_KINDS or o.kind == "bar"]
            want = {id(o) for o in ops if o.kind in MFMA_KINDS or o.kind == "bar"}
            got = [id(o) for o in backbone]
            assert len(set(got)) == len(got), "duplicate backbone op"
            assert want <= set(got), f"backbone misses {len(want - set(got))} ops"
        bpos = {id(o): i for i, o in enumerate(backbone)}
        T = []
        t = 0
        for o in backbone:
            T.append(t)
            t += 16 if o.kind in MFMA_KINDS else 4
        Tend = t
        INF = 10 ** 9
        order = self._topo()
        for o in reversed(order):
            if id(o) in bpos:
                o.dl = T[bpos[id(o)]]
                o.first_bb = bpos[id(o)]
                continue
            dl = Tend
            fb = len(backbone)
            for s, lat, mode in o.succs:
                l = lat
                if mode == "lgkm":
                    l = self.LDS_LAT + o.occ + 16
                elif mode == "vm":
                    l = self.VM_LAT
                if id(s) not in bpos:
                    l += self.cost(o)
                dl = min(dl, s.dl - l)
            o.dl = dl - o.bonus
        for o in ops:
            o.t = None
            o.npred = len(o.preds)
        out = []
        st = dict(t=0, pipe=0, valu_ok=0, mem_ok=0, mfma_ok=0, lastk=None, lds=0)
        dsq = []
        ds_done = [0]
        vmq = [None] * vm_pending
        vm_done = [0]
        fill = [o for o in ops if id(o) not in bpos]
        avail = [o for o in fill if o.npred == 0]
        nfill = len(fill)
        bi = 0
        stall_log = []

        def covered(p, mode):
            if mode == "lgkm":
                return p.qi < ds_done[0]
            return p.qi < vm_done[0]

        def ready_time(o):
            rt = 0
            need = []
            for p, lat, mode in o.preds:
                if mode:
                    if not covered(p, mode):
                        need.append((p, mode))
                        rt = max(rt, p.done)
                else:
                    rt = max(rt, p.t + lat)
            for u in o.uses + o.defs + ([o.cuse] if o.cuse is not None else []):
                if u.val.live_in and u.val.ready:
                    rt = max(rt, u.val.ready)
            return rt, need

        def emit_wait(need):
            lg = max([p.qi for p, m in need if m == "lgkm"], default=None)
            vm = max([p.qi for p, m in need if m == "vm"], default=None)
            parts = []
            tdone = st["t"]
            if vm is not None:
                n = len(vmq) - 1 - vm
                assert n <= 63
                parts.append(f"vmcnt({n})")
                vm_done[0] = max(vm_done[0], vm + 1)
                tdone = max(tdone, vmq[vm].done if vmq[vm] is not None else 0)
            if lg is not None:
                n = len(dsq) - 1 - lg
                if n > 15:
                    n = 15
                    lg = len(dsq) - 1 - 15
                parts.append(f"lgkmcnt({n})")
                ds_done[0] = max(ds_done[0], lg + 1)
                tdone = max(tdone, dsq[lg].done)
            w = Op("wait", "s_waitcnt " + " ".join(parts))
            w.t = st["t"]
            out.append(w)
            st["t"] = max(st["t"] + 4, tdone)

        def start_time(o, rt):
            k = o.kind
            s = max(st["t"], rt)
            if k in MFMA_KINDS:
                p = st["pipe"]
                if st["lastk"] is not None and ((st["lastk"] == "m16") != (k == "m16")):
                    p += 4
                s = max(s, p, st["mfma_ok"])
            elif k in VALU_KINDS:
                s = max(s, st["valu_ok"])
            elif k in DS_KINDS or k in VM_KINDS:
                s = max(s, st["mem_ok"])
            return s

        def issue(o, s):
            k = o.kind
            o.t = s
            out.append(o)
            c = self.cost(o)
            if k in MFMA_KINDS:
                if s > st["pipe"] and st["lastk"] is not None:
                    stall_log.append((bpos.get(id(o)), s - st["pipe"], o.tag))
                st["pipe"] = s + 16
                st["lastk"] = k
                st["valu_ok"] = s + {"m32": 8, "m16": 4, "sm": 12}[k]
                st["mem_ok"] = max(st["mem_ok"], s + {"m32": 8, "m16": 4, "sm": 8}[k])
                st["t"] = s + 4
            elif k in VALU_KINDS:
                st["t"] = s + c
                st["mem_ok"] = max(st["mem_ok"], s + c + 8)
            elif k in DS_KINDS:
                st["t"] = s + c
                o.qi = len(dsq)
                dsq.append(o)
                st["lds"] = max(st["lds"], s) + o.occ
                o.done = st["lds"] + self.LDS_LAT
            elif k in VM_KINDS:
                o.qi = len(vmq)
                vmq.append(o)
                o.done = s + self.VM_LAT
                if k == "vms":
                    st["t"] = s + c - 4
                    st["mfma_ok"] = s + c
                else:
                    st["t"] = s + c
            elif k == "bar":
                st["t"] = s + 12
            else:
                st["t"] = s + 4
                if getattr(o, "vm_all", False):
                    vm_done[0] = len(vmq)
            for sx, lat, mode in o.succs:
                sx.npred -= 1
                if sx.npred == 0 and id(sx) not in bpos:
                    avail.append(sx)

        def released(o):
            if o.not_before is not None and o.not_before.t is None:
                return False
            if o.window is not None:
                tb = T[bi] if bi < len(backbone) else Tend
                return o.dl - 16 * o.window <= tb
            return True

        guard = 0
        while bi < len(backbone) or nfill:
            guard += 1
            assert guard < 200000, "scheduler stuck"
            M = backbone[bi] if bi < len(backbone) else None
            tM = None
            needM = []
            if M is not None and M.npred == 0:
                rt, needM = ready_time(M)
                tM = start_time(M, rt)
            now = st["t"]
            scalar_slot = now < min(st["valu_ok"], st["mem_ok"]) and (tM is None or tM > now or needM)
            scalar_slot = scalar_slot or (out and out[-1].kind in ("m32", "sm"))
            if scalar_slot and not linear:
                need = []
                j = bi
                while j < len(backbone):
                    b = backbone[j]
                    for p, lat, mode in b.preds:
                        if mode and p.t is not None and not covered(p, mode) and (p.done <= now + 4):
                            need.append((p, mode))
                    if b.kind in ("m32", "sm"):
                        break
                    j += 1
                for o in avail:
                    if o.kind == "salu" or not released(o):
                        continue
                    nd = [(p, m) for p, lat, m in o.preds if m and not covered(p, m)]
                    if nd and all(p.done <= now + 4 for p, m in nd):
                        need += nd
                if need and out[-1].kind != "wait":
                    emit_wait(need)
                    continue
            best = None
            cands = []
            for o in avail:
                if not released(o):
                    continue
                rt, need = ready_time(o)
                if need:
                    continue
                if o.kind in DS_KINDS and len(dsq) - ds_done[0] >= 15:
                    continue
                s = start_time(o, rt)
                if o.kind in DS_KINDS and st["lds"] - s > throttle:
                    s = st["lds"] - throttle
                    s += (-s) % 4
                cands.append((o, s))
            limit = tM if (tM is not None and not needM) else None
            if limit is not None:
                fits = []
                for o, s in cands:
                    c = self.cost(o)
                    if o.kind == "salu":
                        if s == now and scalar_slot and s + 4 <= max(limit, now + 4) and now < limit:
                            fits.append((o, s, 0))
                        continue
                    e = s + c
                    if e <= limit:
                        fits.append((o, s, 1))
                    elif (o.kind in DS_KINDS or o.kind in VM_KINDS) and o.slots > 2 and s <= st["pipe"] - 8 and s + 8 <= limit:
                        fits.append((o, s, 1))
                if fits:
                    sal = [f for f in fits if f[2] == 0]
                    if sal:
                        best = min(sal, key=lambda f: f[0].dl)
                    else:
                        smin = min(f[1] for f in fits)
                        first = [f for f in fits if f[1] == smin]
                        mem = [f for f in first if f[0].kind in DS_KINDS or f[0].kind in VM_KINDS]
                        if mem:
                            bm = min(mem, key=lambda f: f[0].dl)
                            bv = min(first, key=lambda f: f[0].dl)
                            tb = T[bi]
                            best = bm if (bm[0].dl <= bv[0].dl + 64 or bv[0].dl > tb + 32) else bv
                        else:
                            best = min(first, key=lambda f: f[0].dl)
                if best is not None:
                    o, s = best[0], best[1]
                    avail.remove(o)
                    nfill -= 1
                    issue(o, s)
                    continue
                issue(M, tM)
                bi += 1
                continue
            if M is not None and M.npred == 0 and needM:
                tw = max(p.done for p, m in needM)
                usable = [(o, s) for o, s in cands if s + self.cost(o) <= max(tw, tM - 4)]
                if usable and not linear:
                    smin = min(s for o, s in usable)
                    o, s = min([c for c in usable if c[1] == smin], key=lambda c: c[0].dl)
                    avail.remove(o)
                    nfill -= 1
                    issue(o, s)
                    continue
                emit_wait(needM)
                continue
            if cands:
                o, s = min(cands, key=lambda c: (c[0].dl))
                early = [c for c in cands if c[1] + self.cost(c[0]) <= s and not (o.kind in DS_KINDS + VM_KINDS and c[0].kind in VALU_KINDS)]
                if early:
                    o, s = min(early, key=lambda c: (c[1], c[0].dl))
                avail.remove(o)
                nfill -= 1
                issue(o, s)
                continue
            waiting = []
            for o in avail:
                if o.not_before is not None and o.not_before.t is None:
                    continue
                rt, need = ready_time(o)
                waiting.append((o, need))
            assert waiting, f"deadlock in {self.name} at backbone {bi} {M.tag if M else ''}"
            rel = [w for w in waiting if released(w[0])]
            if rel:
                o, need = min(rel, key=lambda w: w[0].dl)
                if need:
                    emit_wait(need)
                else:
                    emit_wait([(dsq[ds_done[0]], "lgkm")])
            else:
                o, need = min(waiting, key=lambda w: w[0].dl)
                o.window = None
        if end_wait and ds_done[0] < len(dsq):
            emit_wait([(dsq[-1], "lgkm")])
        self.out = out
        self.cycles = max(st["t"], st["pipe"])
        self.stalls = stall_log
        self.vm_left = len(vmq) - vm_done[0]
        for i, o in enumerate(out):
            o.idx = i
        if verbose:
            nm = sum(o.kind in MFMA_KINDS for o in out)
            print(f"[{self.name}] {len(out)} instrs, {nm} mfma, est {self.cycles} cyc (floor {16 * nm}), stalls {sum(s[1] for s in stall_log)}")
        return out

    def _topo(self):
        n = {id(o): len(o.preds) for o in self.ops}
        q = [o for o in self.ops if n[id(o)] == 0]
        res = []
        while q:
            o = q.pop()
            res.append(o)
            for s, _, _ in o.succs:
                n[id(s)] -= 1
                if n[id(s)] == 0:
                    q.append(s)
        assert len(res) == len(self.ops), "dependency cycle"
        return res

    def intervals(self):
        iv = {}
        N = len(self.out)
        for o in self.out:
            refs = o.defs + o.uses + ([o.cuse] if o.cuse is not None else [])
            for r in refs:
                v = r.val
                if v.persistent:
                    continue
                a, b = iv.get(v, (o.idx, o.idx))
                iv[v] = (min(a, o.idx), max(b, o.idx))
        for v in self.vals:
            if v.persistent:
                continue
            if v not in iv:
                if v.live_in or v.live_out:
                    iv[v] = (-1, N) if (v.live_in and v.live_out) else ((-1, -1) if v.live_in else (N, N))
                else:
                    continue
            a, b = iv[v]
            if v.live_in:
                a = -1
            if v.live_out:
                b = N
            iv[v] = (a, b)
        return iv

    def allocate(self, pools, tries=400, verbose=False):
        iv = self.intervals()
        N = len(self.out)
        press = [0] * (N + 2)
        for v, (a, b) in iv.items():
            if v.cls == "v":
                for i in range(a + 1, b + 2):
                    press[i] += v.n
        self.maxpress = max(press)
        self.press = press
        fixed = [v for v in iv if v.pin is not None]
        dyn = [v for v in iv if v.pin is None]
        rng = random.Random(1)
        for attempt in range(tries):
            occ = {}
            ok = True

            def free(cls, p, n, a, b):
                for r in range(p, p + n):
                    if r not in pools[cls]:
                        return False
                    for (x, y) in occ.get((cls, r), ()):
                        if not (b < x or y < a):
                            return False
                return True

            def take(v, p):
                a, b = iv[v]
                for r in range(p, p + v.n):
                    occ.setdefault((v.cls, r), []).append((a, b))
                v.phys = p

            for v in fixed:
                a, b = iv[v]
                for r in range(v.pin, v.pin + v.n):
                    for (x, y) in occ.get((v.cls, r), ()):
                        assert b < x or y < a, f"pinned overlap {v} in {self.name}"
                take(v, v.pin)
            if attempt == 0:
                order = sorted(dyn, key=lambda v: (-v.n, iv[v][0]))
            elif attempt == 1:
                order = sorted(dyn, key=lambda v: iv[v][0])
            elif attempt == 2:
                order = sorted(dyn, key=lambda v: -(iv[v][1] - iv[v][0]) * v.n)
            else:
                w = rng.random()
                order = sorted(dyn, key=lambda v: (-v.n * (1 + w * rng.random()) * (8 + iv[v][1] - iv[v][0]) ** (w * 0.5)))
            for v in order:
                a, b = iv[v]
                al = 1 if v.n == 1 else 2
                best = None
                for p in sorted(pools[v.cls]):
                    if p % al:
                        continue
                    if free(v.cls, p, v.n, a, b):
                        gap = 0
                        for r in range(p, p + v.n):
                            prev = max([y for (x, y) in occ.get((v.cls, r), ()) if y < a], default=-50)
                            nxt = min([x for (x, y) in occ.get((v.cls, r), ()) if x > b], default=N + 50)
                            gap += min(a - prev, 200) + min(nxt - b, 200)
                        if v.n >= 4 and p % 4:
                            gap += 30
                        if best is None or gap < best[0]:
                            best = (gap, p)
                if best is None:
                    ok = False
                    fail = v
                    break
                take(v, best[1])
            if ok:
                if verbose:
                    print(f"[{self.name}] allocated (attempt {attempt}), max v pressure {self.maxpress} of {len(pools['v'])}")
                return True
        raise RuntimeError(f"[{self.name}] allocation failed at {fail} {iv[fail]}; max pressure {self.maxpress} of {len(pools['v'])}")

    def lines(self, comments=False):
        res = []
        for o in self.out:
            s = "  " + o.text()
            if comments and o.tag:
                s += f"  ; {o.tag} @{o.t}"
            res.append(s)
        return res
```

```python
import sys, os, struct, math
sys.path.insert(0, os.path.dirname(os.path.abspath(__file__)))
from core import *
import check

NAME = "standalone__window_attn_davit__vision"
ROWB = 196224
XBYTES = 100270464
SHIFT = 0x30000
OOB = 0x10000000
NWIN = 21
PERX = 667
L_S, L_H, L_O = 0, 2048, 20480
L_T = 38912 - 768
L_WO = L_T + NWIN * 1152
L_X = L_WO + 4 * 17408
L_FLAG = L_X + 4 * 7936
LDS_BYTES = 163840
assert L_FLAG + 128 == LDS_BYTES
L_STAGE = L_O
WS_PER_WG = 32768


def f32(x):
    return "0x%08x" % struct.unpack("<I", struct.pack("<f", x))[0]


ALPHA = math.sqrt(48 ** -0.5 * math.log2(math.e))

def token_map():
    byres = {r: [] for r in range(8)}
    for y in range(7):
        for x in range(7):
            if (y, x) != (3, 3):
                byres[(x + y) % 8].append((y, x))
    sets = [[byres[r][s] for r in range(8)] for s in range(6)]
    tok = []
    for j in range(3):
        a, b = sorted(sets[2 * j]), sorted(sets[2 * j + 1])
        tok.append(a[:4] + b + a[4:])
    return tok


TOK = token_map()

def P(name, n, cls, pin):
    return Val(name, n, cls, pin=pin, persistent=True)


vIdx, vGuard, vCm = P("idx", 1, "v", 0), P("guard", 1, "v", 1), P("cmask", 1, "v", 2)
cH = [P(f"cH{j}", 1, "v", 3 + j) for j in range(3)]
cV = [P(f"cV{j}", 1, "v", 6 + j) for j in range(3)]
cD = [P(f"cD{j}", 1, "v", 9 + j) for j in range(3)]
vSt = [P(f"st{j}", 1, "v", 12 + j) for j in range(3)]
vRd, vWr4, vWr2, vWo = P("rd", 1, "v", 15), P("wr4", 1, "v", 16), P("wr2", 1, "v", 17), P("wo", 1, "v", 18)
vTk, vTv, vDma = P("tk", 1, "v", 19), P("tv", 1, "v", 20), P("dma", 1, "v", 21)
X = [[[P(f"X{p}{j}{c}", 4, "v", 22 + 36 * p + 12 * j + 4 * c) for c in range(3)] for j in range(3)] for p in range(2)]
V2_PIN = [94, 98, 102]
vSw, vBw, vBr = P("sw", 1, "v", 97), P("bw", 1, "v", 101), P("br", 1, "v", 105)
P2_PIN = [106, 110]
ZREGS = [109, 113]
H0_PIN = [114 + 4 * k for k in range(6)]
Q0_PIN, K0_PIN, ACC_PIN = 138, 144, 150
POOL = {"v": set(range(94, 256)) - {97, 101, 105, 109, 113}, "a": set()}

W = {m: [[P(f"W{m}{c}{k}", 4, "a", 72 * i + 24 * c + 4 * k) for k in range(6)] for c in range(3)] for i, m in enumerate("qkv")}
CW1 = [P(f"cw1{c}", 4, "a", 216 + 10 * c) for c in range(3)]
CW2 = [P(f"cw2{c}", 4, "a", 220 + 10 * c) for c in range(3)]
CWD = [P(f"cwd{c}", 2, "a", 224 + 10 * c) for c in range(3)]
ONES = P("ones", 4, "a", 246)
WOR = P("wores", 4, "a", 250)

sX, sOUT, sWS, sWQ, sWO, sDW = "s[4:7]", "s[8:11]", "s[12:15]", "s[16:19]", "s[20:23]", "s[24:27]"
MG0, MG1 = "s[54:55]", "s[56:57]"

CVT = "v_cvt_pk_bf16_f32 {0}, {1}, {2}"


def wo_slot(c, k):
    return 3 * k + c - 1


def g_load(B, slot, pins=None, live_out=False, window=10):
    H, ops = [], []
    for k in range(6):
        v = B.val(f"H{slot}_{k}", 4, pin=pins[k] if pins else None, live_out=live_out)
        ops.append(B.dsr("ds_read_b128", v, vRd, L_H + slot * 6144 + k * 1024, window=window, tag=f"H{slot}.{k}"))
        H.append(v)
    return H, ops


def g_chain(B, H, m, c, dst, acc=None, transposed=None, tag=""):
    if transposed is None:
        transposed = m != "v"
    if acc is None:
        acc = B.val(f"acc{tag}", 4)
    ms = []
    for k in range(6):
        a, b = (W[m][c][k], H[k]) if transposed else (H[k], W[m][c][k])
        ms.append(B.mfma("m32", acc, a, b, acc if k else None, tag=f"G{tag}.{k}"))
    if dst is not None:
        pack(B, dst, acc, tag)
    return ms


def pack(B, dst, acc, tag=""):
    dst = R(dst)
    acc = R(acc)
    r = []
    for h in range(2):
        r.append(B.valu(CVT, Ref(dst.val, dst.off + h, 1), Ref(acc.val, acc.off + 2 * h, 1), Ref(acc.val, acc.off + 2 * h + 1, 1), tag="cvt" + tag))
    return r


def s_mfma(B, K, Q, left, tag):
    acc = B.val("S" + tag, 4)
    m16 = B.mfma("m16", acc, K[4:6], Q[4:6], vCm.all().wide(4) if left else None, tag="S16." + tag)
    m32 = B.mfma("m32", acc, K[0:4], Q[0:4], acc, tag="S32." + tag)
    return acc, m16, m32


def s_tile(B, K, Q, dst, left=False, tag=""):
    acc, m16, m32 = s_mfma(B, K, Q, left, tag)
    if left:
        B.valu("v_exp_f32 {0}, {1}", acc[0], acc[0], kind="trans", tag="exp" + tag)
        B.valu(CVT, dst, acc[0], "0", tag="cvtP" + tag)
    else:
        for r in range(4):
            B.valu("v_exp_f32 {0}, {1}", acc[r], acc[r], kind="trans", tag="exp" + tag)
        pack(B, dst, acc, "P" + tag)
    return m16, m32


def s_batch(pairs):
    return [p[0] for p in pairs] + [p[1] for p in pairs]


def pv_tile(B, j, P1, P2, V1, V2, guard=True):
    l = B.val(f"l{j}", 4)
    O = [B.val(f"O{j}{c}", 4) for c in range(3)]
    p2 = P2.all().wide(4)
    ms = [B.mfma("m32", l, ONES, P1, tag=f"RS{j}"), B.mfma("m32", l, ONES, p2, l, tag=f"RS{j}")]
    for c in range(3):
        ms += [B.mfma("m32", O[c], V1[c], P1, tag=f"PV{j}{c}"), B.mfma("m32", O[c], V2[c].all().wide(4), p2, O[c], tag=f"PV{j}{c}")]
    ri = B.val(f"ri{j}")
    B.valu("v_mul_f32 {0}, {1}, {2}", l[0], f32(ALPHA), l[0], tag="lmul")
    B.valu("v_rcp_f32 {0}, {1}", ri, l[0], kind="trans", tag="rcp")
    if guard:
        B.valu("v_max3_f32 {0}, {0}, {1}, {2}", vGuard, l[0], ri, rmw=True, tag="guard")
    o4, o2 = B.val(f"o4{j}", 4), B.val(f"o2{j}", 2)
    for c in range(3):
        for r in range(4):
            B.valu("v_mul_f32 {0}, {1}, {2}", O[c][r], O[c][r], ri, tag="onorm")
        pack(B, o4[2 * c:2 * c + 2] if c < 2 else o2, O[c], f"O{j}")
    wr = [B.dsw("ds_write_b128", vWr4, o4, L_O + j * 6144, tag=f"wO{j}"), B.dsw("ds_write_b64", vWr2, o2, L_O + j * 6144, tag=f"wO{j}")]
    return ms, wr


def pv_left(B, P1, P2, V1, V2, guard=True):
    l = B.val("lL", 4)
    O = [B.val(f"OL{c}", 4) for c in range(3)]
    p2 = P2.all().wide(4)
    ms = [B.mfma("m32", l, P1, ONES, tag="RSL"), B.mfma("m32", l, p2, ONES, l, tag="RSL")]
    for c in range(3):
        ms += [B.mfma("m32", O[c], P1, V1[c], tag=f"PVL{c}"), B.mfma("m32", O[c], p2, V2[c].all().wide(4), O[c], tag=f"PVL{c}")]
    ri = B.val("riL")
    B.valu("v_mul_f32 {0}, {1}, {2}", l[0], f32(ALPHA), l[0], tag="lmul")
    B.valu("v_rcp_f32 {0}, {1}", ri, l[0], kind="trans", tag="rcp")
    if guard:
        B.valu("v_max3_f32 {0}, {0}, {1}, {2}", vGuard, l[0], ri, rmw=True, tag="guard")
    t = B.val("oL")
    B.valu("v_cndmask_b32 {0}, {1}, {2}, " + MG0, t, O[1][0], O[0][0], tag="selL")
    B.valu("v_cndmask_b32 {0}, {1}, {2}, " + MG1, t, O[2][0], t, tag="selL")
    B.valu("v_mul_f32 {0}, {1}, {2}", t, t, ri, tag="onormL")
    B.valu(CVT, t, t, t, tag="cvtL")
    wr = B.dsw("ds_write_b16", vTv, t, 384, tag="wOL")
    return ms, wr


def conv_mfmas(B, Xd, c, b1, b2, bd, tag):
    m0 = B.mfma("m16", Xd, CWD[c], bd, tag="C16." + tag)
    m1 = B.mfma("sm", Xd, CW1[c], b1, idx=vIdx, tag="Cs1." + tag)
    m2 = B.mfma("sm", Xd, CW2[c], b2, idx=vIdx, tag="Cs2." + tag)
    return m0, m1, m2


def conv_tile(B, Xj, j, window=8):
    k16, sms, rds = [], [], []
    for c in range(3):
        bd, b1, b2 = B.val(f"bd{j}{c}", 2), B.val(f"b1{j}{c}", 8), B.val(f"b2{j}{c}", 8)
        rds.append(B.dsr("ds_read_b64", bd, cD[j], 32 * c, occ=16, window=window, tag="xr"))
        rds.append(B.dsr("ds_read_b128", b1[0:4], cH[j], 32 * c, window=window, tag="xr"))
        rds.append(B.dsr("ds_read_b128", b1[4:8], cH[j], 32 * c + 864, window=window, tag="xr"))
        rds.append(B.dsr("ds_read_b128", b2[0:4], cH[j], 32 * c + 1728, window=window, tag="xr"))
        rds.append(B.dsr("ds_read_b128", b2[4:8], cV[j], 32 * c, window=window, tag="xr"))
        m0, m1, m2 = conv_mfmas(B, Xj[c], c, b1, b2, bd, f"{j}{c}")
        k16.append(m0)
        sms.append([m1, m2])
    return k16, sms, rds


def ln1(B, tiles):
    e = []
    for j, Xj in enumerate(tiles):
        a, b = B.val(f"sa{j}"), B.val(f"sb{j}")
        xs = [Xj[c][r] for c in range(3) for r in range(4)]
        B.valu("v_add_f32 {0}, {1}, {2}", a, xs[0], xs[1], tag="st")
        B.valu("v_mul_f32 {0}, {1}, {2}", b, xs[0], xs[0], tag="st")
        B.valu("v_fmac_f32 {0}, {1}, {2}", b, xs[1], xs[1], rmw=True, tag="st")
        for x in xs[2:]:
            B.valu("v_add_f32 {0}, {1}, {2}", a, a, x, tag="st")
            B.valu("v_fmac_f32 {0}, {1}, {2}", b, x, x, rmw=True, tag="st")
        B.swap(32, a, b, tag="st")
        B.valu("v_add_f32 {0}, {1}, {2}", a, a, b, tag="st")
        e.append(a)
    wr = []
    B.swap(16, e[0], e[1], tag="st")
    B.valu("v_add_f32 {0}, {1}, {2}", e[0], e[0], e[1], tag="st")
    wr.append(B.dsw("ds_write_b32", vSw, e[0], L_S, tag="wS"))
    if len(tiles) > 2:
        t = B.val("se2")
        B.valu("v_mov_b32 {0}, {1}", t, e[2], tag="st")
        B.swap(16, e[2], t, tag="st")
        B.valu("v_add_f32 {0}, {1}, {2}", e[2], e[2], t, tag="st")
        wr.append(B.dsw("ds_write_b32", vSw, e[2], L_S + 512, tag="wS"))
    return wr


def ln2_head(B):
    a, b = B.val("ra", 4), B.val("rb", 4)
    rd = [B.dsr("ds_read_b128", a, vRd, L_S, window=None, tag="rS"), B.dsr("ds_read_b128", b, vRd, L_S + 1024, window=None, tag="rS")]
    for v in (a, b):
        B.valu("v_add_f32 {0}, {1}, {2}", v[0], v[0], v[1], tag="ln")
        B.valu("v_add_f32 {0}, {1}, {2}", v[2], v[2], v[3], tag="ln")
        B.valu("v_add_f32 {0}, {1}, {2}", v[0], v[0], v[2], tag="ln")
    E = 192 * 1e-5
    B.valu("v_mul_f32 {0}, {1}, {2}", a[1], f32(1.0 / 192), a[0], tag="ln")
    B.valu("v_fma_f32 {0}, -{1}, {2}, {3}", b[0], a[1], a[0], b[0], tag="ln")
    B.valu("v_max_f32 {0}, 0, {1}", b[0], b[0], tag="ln")
    B.valu("v_add_f32 {0}, {1}, {2}", b[0], f32(E), b[0], tag="ln")
    B.valu("v_rsq_f32 {0}, {1}", b[0], b[0], kind="trans", tag="ln")
    B.valu("v_mul_f32 {0}, {1}, {2}", b[0], f32(ALPHA * math.sqrt(192.0)), b[0], tag="ln")
    B.valu("v_mul_f32 {0}, -{1}, {2}", b[1], a[1], b[0], tag="ln")
    wr = B.dsw("ds_write_b64", vBw, b[0:2], 0, tag="wB")
    return rd, wr


BC_OFF = [L_S + 768, L_S + 768 + 128, L_S + 1792]


def ln2_tile(B, Xj, j, slot):
    rn = B.val(f"rn{j}", 2)
    rd = B.dsr("ds_read_b64", rn, vBr, BC_OFF[j], window=None, tag="rB")
    h4, h2 = B.val(f"h4{j}", 4), B.val(f"h2{j}", 2)
    for c in range(3):
        for h in range(2):
            d = h4[2 * c + h] if c < 2 else h2[h]
            t = B.val("ht")
            B.valu("v_fma_f32 {0}, {1}, {2}, {3}", d, Xj[c][2 * h], rn[0], rn[1], tag="nrm")
            B.valu("v_fma_f32 {0}, {1}, {2}, {3}", t, Xj[c][2 * h + 1], rn[0], rn[1], tag="nrm")
            B.valu(CVT, d, d, t, tag="cvth")
    wr = [B.dsw("ds_write_b128", vWr4, h4, L_H + slot * 6144, tag=f"wh{slot}"), B.dsw("ds_write_b64", vWr2, h2, L_H + slot * 6144, tag=f"wh{slot}")]
    return rd, wr


def proj(B, tiles, window=8):
    steps, rds = [], []
    for k in range(6):
        wo = []
        for c in range(3):
            if (c, k) == (0, 0):
                wo.append(WOR)
            else:
                v = B.val(f"wo{c}{k}", 4)
                B.dsr("ds_read_b128", v, vWo, wo_slot(c, k) * 1024, window=window, tag=f"rWo{c}{k}")
                wo.append(v)
        st = []
        for j, (Xj, ld) in enumerate(tiles):
            o, r = ld(k)
            rds += r
            for c in range(3):
                st.append(B.mfma("m32", Xj[c], wo[c], o, Xj[c], tag=f"P{k}.{j}{c}"))
        steps.append(st)
    return steps, rds


def o_loader(B, j, window=8):
    def ld(k):
        v = B.val(f"of{j}{k}", 4)
        return v, [B.dsr("ds_read_b128", v, vRd, L_O + j * 6144 + k * 1024, window=window, tag=f"rO{j}{k}")]
    return ld


def out_store(B, Xj, addr, soff):
    sts = []
    for c in range(3):
        pk = B.val("opk", 2)
        pack(B, pk, Xj[c], "out")
        sts.append(B.vms("buffer_store_dwordx2", pk, addr, sOUT, soff, 32 * c, tag="store"))
    return sts


MAGIC, MSH = 7183, 22
assert all((q * MAGIC) >> MSH == q // 584 for q in range(6200))


def win_calc(B):
    L = ["s_lshl_b32 s60, s31, 5", "s_add_u32 s61, s60, s30", "s_add_u32 s60, s60, s29",
         f"s_mul_i32 s62, s60, {MAGIC}", f"s_lshr_b32 s62, s62, {MSH}", "s_mul_i32 s63, s62, 584", "s_sub_u32 s63, s60, s63",
         "s_lshr_b32 s64, s63, 3", "s_and_b32 s65, s63, 7", "s_lshl_b32 s66, s62, 3", "s_add_u32 s65, s65, s66",
         "s_cmp_ge_u32 s60, 5256", "s_cselect_b32 s64, s63, s64", "s_cselect_b32 s65, 72, s65",
         f"s_mul_i32 s66, s65, {7 * ROWB}", "s_mul_i32 s67, s64, 2688", "s_add_u32 s35, s66, s67",
         f"s_cmp_ge_u32 s61, {PERX}", f"s_cselect_b32 s35, {OOB}, s35",
         "s_cmp_ge_u32 s60, 5329", f"s_cselect_b32 s35, {OOB}, s35",
         "s_cmp_eq_u32 s65, 0", f"s_cselect_b32 s36, {OOB}, s35"]
    for r in range(1, 9):
        rr = r if r < 5 else r - 5
        L.append(f"s_add_u32 s{36 + r}, s35, {r * ROWB - 864 * rr}")
    L += ["s_cmp_eq_u32 s64, 0", "s_cselect_b64 s[52:53], s[48:49], 0", "s_cmp_eq_u32 s64, 72", "s_cselect_b64 s[52:53], s[50:51], s[52:53]",
          "s_add_u32 s31, s31, 1"]
    return [B.salu(x, tag="win") for x in L]


def x_dma(B, after_reads):
    calc = win_calc(B)
    a = B.val("dmaaddr")
    cm = B.valu("v_cndmask_b32 {0}, {1}, 2.0, s[52:53]", a, vDma, tag="dmaaddr")
    B.dep(calc[-1], cm, 4)
    dm = []
    m0 = B.salu("s_mov_b32 m0, s58", tag="m0")
    for r in range(9):
        if r == 5:
            m0 = B.salu("s_mov_b32 m0, s59", tag="m0")
            B.dep(dm[-1], m0, 4)
        d = B.dma(a, sX, f"s{36 + r}", 864 * (r if r < 5 else r - 5), tag=f"dma{r}")
        B.dep(m0, d, 8)
        if dm:
            B.dep(dm[-1], d, 4)
        else:
            for x in after_reads:
                B.dep(x, d, 0, "lgkm")
        dm.append(d)
    return cm, dm


def rotate(B, after):
    ops = [B.salu("s_mov_b32 s32, s33"), B.salu("s_mov_b32 s33, s34"), B.salu("s_mov_b32 s34, s35")]
    for x in after:
        B.dep(x, ops[0], 4)
    return ops


def weave(*streams):
    items = []
    for si, s in enumerate(streams):
        n = len(s)
        for i, ch in enumerate(s):
            items.append(((i + 0.5) / n, si, ch))
    items.sort(key=lambda x: (x[0], x[1]))
    return [o for _, _, ch in items for o in ch]


def flat(l):
    r = []
    for x in l:
        if isinstance(x, (list, tuple)):
            r += flat(x)
        else:
            r.append(x)
    return r


def body(name, p, has_p=True, has_next=True, opt=None):
    opt = opt or {}
    B = Block(name)
    Xc, Xo = X[p], X[1 - p]
    H0 = [B.val(f"H0in{k}", 4, pin=H0_PIN[k], live_in=True) for k in range(6)]
    Q = [B.val("Q0", 6, pin=Q0_PIN, live_in=True), B.val("Q1", 6), B.val("Q2", 6)]
    K = [B.val("K0", 6, pin=K0_PIN, live_in=True), B.val("K1", 6), B.val("K2", 6)]
    accx = B.val("accx", 4, pin=ACC_PIN, live_in=True, ready=24)
    V1 = [B.val(f"V1{c}", 4) for c in range(3)]
    V2 = [B.val(f"V2{c}", 3, pin=V2_PIN[c]) for c in range(3)]
    pack(B, K[0][4:6], accx, "K0")
    KL, QL = B.val("KL", 6), B.val("QL", 6)
    trd = [B.dsr("ds_read2_b64", QL[0:4], vTk, " offset0:96 offset1:97", occ=32, tag="rQL"), B.dsr("ds_read_b64", QL[4:6], vTk, 768 + 16, tag="rQL"),
           B.dsr("ds_read2_b64", KL[0:4], vTk, " offset0:0 offset1:1", occ=32, tag="rKL"), B.dsr("ds_read_b64", KL[4:6], vTk, 16, tag="rKL")]
    for c in range(3):
        trd.append(B.dsr("ds_read_u16", V2[c][2], vTv, 32 * c, tag="rVL"))
    B.valu("v_add_u32 {0}, 1152, {0}", vTk, rmw=True, tag="tk")
    gv0 = [g_chain(B, H0, "v", c, V1[c][0:2], tag=f"v0{c}") for c in range(3)]
    b1 = B.bar("B1")
    for j in (1, 2):
        rd, wr = ln2_tile(B, Xc[j], j, j)
        B.before_bar([rd] + wr, b1)
    stores = []
    bs = B.bar("Bs")
    vw = None
    if has_next:
        vw = B.salu("s_waitcnt vmcnt(0)", tag="vmwait")
        vw.vm_all = True
        vw.window = opt.get("vw_window", 2)
    if has_p:
        psteps, ords = proj(B, [(Xo[j], o_loader(B, j)) for j in range(3)])
        B.before_bar(ords, bs)
        for j in range(3):
            stores += out_store(B, Xo[j], vSt[j], "s32")
        if vw is not None:
            B.after(vw, stores)
    H1, r1 = g_load(B, 1)
    H2, r2 = g_load(B, 2)
    B.after(b1, r1 + r2)
    g1 = {m: [g_chain(B, H1, m, c, {"q": Q[1][2 * c:2 * c + 2], "k": K[1][2 * c:2 * c + 2], "v": V1[c][2:4]}[m], tag=f"{m}1{c}") for c in range(3)] for m in "qkv"}
    g2 = {m: [g_chain(B, H2, m, c, {"q": Q[2][2 * c:2 * c + 2], "k": K[2][2 * c:2 * c + 2], "v": V2[c][0:2]}[m], tag=f"{m}2{c}") for c in range(3)] for m in "qkv"}
    bh = B.bar("Bh")
    bo = B.bar("Bo")
    B.before_bar(r1 + r2, bo)
    B.before_bar(trd, bh)
    if has_next:
        cv = [conv_tile(B, Xo[j], j) for j in range(3)]
        xr = flat([c[2] for c in cv])
        B.after(vw, xr)
        cm, dm = x_dma(B, xr)
        swr = ln1(B, Xo)
        B.after(b1, swr)
        B.before_bar(swr, bs)
        srd, bwr = ln2_head(B)
        B.after(bs, srd)
        B.before_bar(srd, bh)
        rd, wr = ln2_tile(B, Xo[0], 0, 0)
        B.dep(bwr, rd, 4)
        B.before_bar(wr, bh)
    rotate(B, stores)
    P1 = [B.val(f"P1{j}", 4) for j in range(4)]
    order2 = [0, 1, 3, 2]
    P2 = {j: B.val(f"P2{j}", 3, pin=P2_PIN[i % 2]) for i, j in enumerate(order2)}
    Qs = Q + [QL]
    S = {}
    for j in order2:
        for i in range(2):
            S[i, j] = s_tile(B, K[i], Qs[j], P1[j][2 * i:2 * i + 2], tag=f"{i}{j}")
    pv = {}
    first_def = {}
    owr = []
    for n_, j in enumerate(order2):
        n0 = len(B.ops)
        S[2, j] = s_tile(B, K[2], Qs[j], P2[j][0:2], tag=f"2{j}")
        S[3, j] = s_tile(B, KL, Qs[j], P2[j][2], left=True, tag=f"3{j}")
        if n_ >= 2:
            for o in B.ops[n0:]:
                if any(d.val is P2[j] for d in o.defs):
                    for m in pv[order2[n_ - 2]]:
                        B.dep(m, o, 4)
        if j == 3:
            pv[j], w = pv_left(B, P1[j], P2[j], V1, V2)
            B.valu("v_add_u32 {0}, 1152, {0}", vTv, rmw=True, tag="tv")
            B.dep(trd[0], w, 0, "lgkm")
            B.dep(trd[1], w, 0, "lgkm")
            B.before_bar([w], bo)
        else:
            pv[j], w = pv_tile(B, j, P1[j], P2[j], V1, V2)
            B.after(bs, w)
            if j == 2:
                B.after(bh, w)
            B.before_bar(w, bo)
    if has_next:
        Hn, rn = g_load(B, 0, pins=H0_PIN, live_out=True)
        B.after(bh, rn)
        B.before_bar(rn, bo)
        for k in range(6):
            B.dep(gv0[2][k], rn[k], 4)
        Qn = B.val("Q0n", 6, pin=Q0_PIN, live_out=True)
        Kn = B.val("K0n", 6, pin=K0_PIN, live_out=True)
        accn = B.val("accn", 4, pin=ACC_PIN, live_out=True)
        n0 = len(B.ops)
        gq = [g_chain(B, Hn, "q", c, Qn[2 * c:2 * c + 2], tag=f"qn{c}") for c in range(3)]
        gk = [g_chain(B, Hn, "k", c, Kn[2 * c:2 * c + 2], tag=f"kn{c}") for c in range(2)]
        gk.append(g_chain(B, Hn, "k", 2, None, acc=accn, tag="kn2"))
        for o in B.ops[n0:]:
            for d in o.defs:
                if d.val is Qn:
                    for i in range(4):
                        B.dep(S[i, 0][1], o, 4)
                if d.val is Kn:
                    for j in range(4):
                        B.dep(S[0, j][1], o, 4)
    bb = []
    if has_p:
        bb += gv0[0] + psteps[0] + gv0[1] + psteps[1] + gv0[2] + psteps[2]
        bb += s_batch([S[0, 0], S[0, 3]]) + psteps[3] + psteps[4] + [b1] + psteps[5]
    else:
        bb += gv0[0] + gv0[1] + s_batch([S[0, 0], S[0, 3]]) + gv0[2] + [b1]
    g1l = g1["k"] + g1["q"] + g1["v"]
    if has_next:
        for j in range(3):
            bb += g1l[3 * j] + cv[j][0] + cv[j][1][0] + g1l[3 * j + 1][:3] + cv[j][1][1] + g1l[3 * j + 1][3:] + cv[j][1][2] + g1l[3 * j + 2]
    else:
        bb += flat(g1l)
    bb += s_batch([S[1, 0], S[0, 1]]) + g2["k"][0] + g2["k"][1] + [bs] + g2["k"][2]
    bb += s_batch([S[1, 1], S[1, 3]]) + g2["v"][0] + g2["v"][1] + s_batch([S[2, 0], S[3, 0]]) + g2["v"][2]
    bb += s_batch([S[2, 1], S[3, 1]]) + g2["q"][0] + pv[0] + g2["q"][1] + s_batch([S[2, 3], S[3, 3]]) + pv[1] + g2["q"][2] + [bh]
    if has_next:
        bb += pv[3] + s_batch([S[0, 2], S[1, 2], S[2, 2], S[3, 2]]) + gq[0] + gq[1] + gq[2] + pv[2] + gk[0] + gk[1] + gk[2] + [bo]
    else:
        bb += s_batch([S[0, 2], S[1, 2], S[2, 2], S[3, 2]]) + pv[3] + pv[2] + [bo]
    B.schedule(bb, vm_pending=0, verbose=True)
    B.allocate(POOL, verbose=True)
    return B


def lane_table(dst, tmp, vt, vals):
    w = [sum(vals[4 * i + k] << (8 * k) for k in range(4)) for i in range(4)]
    L = [f"v_mov_b32 v{dst}, 0x{w[0]:08x}"]
    for i in range(1, 4):
        L += [f"v_mov_b32 v{tmp}, 0x{w[i]:08x}", f"v_cmp_le_u32 vcc, {4 * i}, v{vt}", f"v_cndmask_b32 v{dst}, v{dst}, v{tmp}, vcc"]
    L += [f"v_and_b32 v{tmp}, 3, v{vt}", f"v_lshlrev_b32 v{tmp}, 3, v{tmp}", f"v_bfe_u32 v{dst}, v{dst}, v{tmp}, 8"]
    return L


VL, VG, VT = 250, 251, 252


def left_offsets(dst, a, t0, t1, t2):
    return [f"v_add_u32 v{t0}, {16 * a}, v{VT}", f"v_lshlrev_b32 v{t0}, 5, v{t0}",
            f"v_add_u32 v{t1}, s30, v{t0}", f"v_cmp_gt_u32 s[60:61], s72, v{t1}",
            f"v_add_u32 v{t0}, s29, v{t0}", f"v_cmp_gt_u32 s[62:63], s73, v{t0}", "s_and_b64 s[60:61], s[60:61], s[62:63]",
            f"v_mul_u32_u24 v{t1}, {MAGIC}, v{t0}", f"v_lshrrev_b32 v{t1}, {MSH}, v{t1}",
            f"v_mul_u32_u24 v{t2}, 584, v{t1}", f"v_sub_u32 v{t2}, v{t0}, v{t2}",
            f"v_cmp_le_u32 vcc, 5256, v{t0}",
            f"v_and_b32 v{dst}, 7, v{t2}", f"v_lshl_add_u32 v{t1}, v{t1}, 3, v{dst}",
            f"v_mov_b32 v{dst}, 72", f"v_cndmask_b32 v{t1}, v{t1}, v{dst}, vcc",
            f"v_lshrrev_b32 v{dst}, 3, v{t2}", f"v_cndmask_b32 v{t2}, v{dst}, v{t2}, vcc",
            f"v_mul_u32_u24 v{t1}, {7 * ROWB}, v{t1}", f"v_mul_u32_u24 v{t2}, 2688, v{t2}", f"v_add_u32 v{dst}, v{t1}, v{t2}",
            f"v_cndmask_b32 v{dst}, 2.0, v{dst}, s[60:61]"]


def lane_ids():
    return [f"v_mbcnt_lo_u32_b32 v{VL}, -1, 0", f"v_mbcnt_hi_u32_b32 v{VL}, -1, v{VL}",
            f"v_lshrrev_b32 v{VG}, 4, v{VL}", f"v_and_b32 v{VT}, 15, v{VL}"]


def setup():
    L = ["s_cmp_ge_u32 s2, 256", "s_cbranch_scc1 L_exit",
         "s_load_dwordx8 s[36:43], s[0:1], 0", "s_load_dwordx2 s[44:45], s[0:1], 32", "s_load_dwordx2 s[46:47], s[0:1], 48",
         "v_lshrrev_b32 v1, 6, v0", "s_and_b32 s60, s2, 7", "s_lshr_b32 s30, s2, 3", "v_readfirstlane_b32 s28, v1",
         f"s_mul_i32 s29, s60, {PERX}", "s_add_u32 s29, s29, s30", f"s_mov_b32 s72, {PERX}", "s_mov_b32 s73, 5329",
         "s_mov_b32 s71, 0", "s_waitcnt lgkmcnt(0)",
         f"s_sub_u32 s4, s36, {SHIFT}", "s_subb_u32 s5, s37, 0", f"s_mov_b32 s6, {XBYTES + SHIFT}", "s_mov_b32 s7, 0x20000",
         "s_mov_b32 s8, s44", "s_mov_b32 s9, s45", f"s_mov_b32 s10, {XBYTES}", "s_mov_b32 s11, 0x20000",
         "s_mov_b32 s12, s46", "s_mov_b32 s13, s47", f"s_mov_b32 s14, {256 * WS_PER_WG}", "s_mov_b32 s15, 0x20000",
         "s_mov_b32 s16, s40", "s_mov_b32 s17, s41", "s_mov_b32 s18, 221184", "s_mov_b32 s19, 0x20000",
         "s_mov_b32 s20, s42", "s_mov_b32 s21, s43", "s_mov_b32 s22, 73728", "s_mov_b32 s23, 0x20000",
         "s_mov_b32 s24, s38", "s_mov_b32 s25, s39", "s_mov_b32 s26, 3456", "s_mov_b32 s27, 0x20000",
         "s_mov_b64 s[48:49], 0x3f", "s_mov_b32 s50, 0", "s_mov_b32 s51, 0x3f0000",
         "s_mov_b32 s54, 0xffff", "s_mov_b32 s55, 0", "s_mov_b32 s56, -1", "s_mov_b32 s57, 0",
         "s_mul_i32 s58, s28, 7936", f"s_add_u32 s58, s58, {L_X}", "s_add_u32 s59, s58, 4320",
         "s_mul_i32 s74, s28, 96", f"s_mul_i32 s75, s2, {WS_PER_WG}", "s_lshl_b32 s76, s28, 10", "s_add_u32 s75, s75, s76",
         f"s_mov_b32 s77, {ROWB}", f"s_mov_b32 s78, {2 * ROWB}"]
    return L


def consts():
    L = ["s_mov_b32 s31, 0"] + lane_ids()
    t0, t1, t2, t3 = 246, 247, 248, 249
    r = lambda v: f"v{v.pin}"
    L += [f"v_mul_u32_u24 v{t0}, 43, v{VL}", f"v_lshrrev_b32 v{t0}, 8, v{t0}", f"v_mul_u32_u24 v{t1}, 6, v{t0}", f"v_sub_u32 v{t1}, v{VL}, v{t1}",
          f"v_mul_u32_u24 v{t0}, 384, v{t0}", f"v_lshl_add_u32 v{t0}, v{t1}, 4, v{t0}", f"v_add_u32 v{t0}, s74, v{t0}",
          f"v_cmp_gt_u32 vcc, 54, v{VL}", f"v_cndmask_b32 {r(vDma)}, 2.0, v{t0}, vcc"]
    L += [f"v_and_b32 v{t0}, 3, v{VL}", f"v_mul_u32_u24 {r(vIdx)}, 0x5555, v{t0}", f"v_mov_b32 {r(vGuard)}, 0",
          f"v_mov_b32 v{t0}, 0xf149f2ca", f"v_cndmask_b32 {r(vCm)}, v{t0}, 0, {MG0}",
          f"v_mov_b32 v{ZREGS[0]}, 0", f"v_mov_b32 v{ZREGS[1]}, 0"]
    L += [f"v_lshrrev_b32 v{t2}, 1, v{VG}", f"v_and_b32 v{t3}, 1, v{VG}", f"v_lshlrev_b32 v{t3}, 4, v{t3}"]
    for j in range(3):
        L += lane_table(t0, t1, VT, [y * 16 + x for (y, x) in TOK[j]])
        L += [f"v_lshrrev_b32 v{t1}, 4, v{t0}", f"v_and_b32 v{t0}, 15, v{t0}",
              f"v_mul_u32_u24 {r(vSt[j])}, {ROWB}, v{t1}", f"v_mul_u32_u24 {r(cD[j])}, 384, v{t0}", f"v_add_u32 {r(vSt[j])}, {r(vSt[j])}, {r(cD[j])}",
              f"v_lshl_add_u32 {r(vSt[j])}, v{VG}, 3, {r(vSt[j])}", f"v_add_u32 {r(vSt[j])}, s74, {r(vSt[j])}",
              f"v_mul_u32_u24 v{t1}, 9, v{t1}", f"v_add_u32 v{t0}, v{t0}, v{t1}", f"v_mul_u32_u24 v{t0}, 96, v{t0}", f"v_add_u32 v{t0}, s58, v{t0}",
              f"v_mul_u32_u24 v{t1}, 96, v{t2}", f"v_add3_u32 {r(cH[j])}, v{t0}, v{t1}, v{t3}",
              f"v_mul_u32_u24 v{t1}, 864, v{t2}", f"v_add3_u32 {r(cV[j])}, v{t0}, v{t1}, v{t3}", f"v_add_u32 {r(cV[j])}, 192, {r(cV[j])}",
              f"v_lshl_add_u32 {r(cD[j])}, v{VG}, 3, v{t0}", f"v_add_u32 {r(cD[j])}, 1920, {r(cD[j])}"]
    L += [f"v_lshlrev_b32 {r(vRd)}, 4, v{VL}", f"v_add_u32 {r(vWr4)}, s76, {r(vRd)}",
          "s_lshr_b32 s60, s28, 1", "s_add_u32 s60, s60, 4", "s_lshl_b32 s60, s60, 10", "s_and_b32 s61, s28, 1", "s_lshl_b32 s61, s61, 3", "s_add_u32 s60, s60, s61",
          f"v_add_u32 {r(vWr2)}, s60, {r(vRd)}",
          "s_mul_i32 s60, s28, 17408", f"s_add_u32 s60, s60, {L_WO}", f"v_add_u32 {r(vWo)}, s60, {r(vRd)}",
          f"s_add_u32 s60, s74, {L_T}", f"v_mul_u32_u24 v{t0}, 24, v{VG}", f"v_add_u32 {r(vTk)}, s60, v{t0}",
          f"v_min_u32 v{t0}, 2, v{VG}", f"v_lshl_add_u32 v{t0}, v{t0}, 4, v{VT}", "s_add_u32 s60, s60, 384", f"v_lshl_add_u32 {r(vTv)}, v{t0}, 1, s60",
          f"v_add_u32 v{t0}, v{t3}, v{VT}", f"v_lshlrev_b32 v{t1}, 10, v{t2}",
          f"v_lshl_add_u32 {r(vSw)}, v{t0}, 4, v{t1}", "s_lshl_b32 s60, s28, 2", f"v_add_u32 {r(vSw)}, s60, {r(vSw)}",
          f"v_lshl_add_u32 {r(vBw)}, v{t0}, 3, v{t1}", f"v_add_u32 {r(vBw)}, {L_S + 768}, {r(vBw)}",
          f"v_lshlrev_b32 {r(vBr)}, 3, v{VT}"]
    for a in range(4):
        L += [f"v_mov_b32 v{t0}, 0x3f803f80", f"v_accvgpr_write_b32 a{ONES.pin + a}, v{t0}"] if a == 0 else [f"v_accvgpr_write_b32 a{ONES.pin + a}, v{t0}"]
    return L


PRE_GH, PRE_GV, PRE_GD = [226, 229], [227, 230], [228, 231]
PRE_DW = [232, 233, 234]
PRE_WQ, PRE_WOA = [235, 236, 237], [238, 239, 240]
PRE_TR, PRE_TK, PRE_TV, PRE_WS = 241, 242, 243, 244


def pre_addr():
    t0, t1, t2, t3 = 246, 247, 248, 249
    L = []
    for a in range(2):
        L += left_offsets(245, a, t0, t1, t2)
        L += [f"v_add_u32 v245, s74, v245", f"v_lshrrev_b32 v{t2}, 1, v{VG}",
              f"v_mul_u32_u24 v{t0}, 384, v{t2}", f"v_add3_u32 v{PRE_GH[a]}, v245, v{t0}, v{t3}", f"v_add_u32 v{PRE_GH[a]}, {3 * ROWB + 3 * 384}, v{PRE_GH[a]}",
              f"v_mul_u32_u24 v{t0}, {ROWB}, v{t2}", f"v_add3_u32 v{PRE_GV[a]}, v245, v{t0}, v{t3}", f"v_add_u32 v{PRE_GV[a]}, {3 * ROWB + 5 * 384}, v{PRE_GV[a]}",
              f"v_lshl_add_u32 v{PRE_GD[a]}, v{VG}, 3, v245", f"v_add_u32 v{PRE_GD[a]}, {5 * ROWB + 5 * 384}, v{PRE_GD[a]}"]
    L += [f"v_lshl_add_u32 v{t0}, v{VT}, 1, s74", f"v_lshlrev_b32 v{t1}, 2, v{VG}",
          f"v_lshrrev_b32 v{t2}, v{t1}, s79", f"v_and_b32 v{t2}, 15, v{t2}", f"v_mul_u32_u24 v{t2}, 384, v{t2}", f"v_add_u32 v{PRE_DW[0]}, v{t0}, v{t2}",
          f"v_lshrrev_b32 v{t2}, v{t1}, s80", f"v_and_b32 v{t2}, 15, v{t2}", f"v_mul_u32_u24 v{t2}, 384, v{t2}", f"v_add_u32 v{PRE_DW[1]}, v{t0}, v{t2}",
          f"v_add_u32 v{PRE_DW[2]}, {8 * 384}, v{t0}"]
    L = ["s_mov_b32 s79, 0x4310", "s_mov_b32 s80, 0x5276"] + L
    for i in range(3):
        L += [f"v_add_u32 v{t0}, {64 * i}, v{VL}", f"v_mul_u32_u24 v{t1}, 171, v{t0}", f"v_lshrrev_b32 v{t1}, 10, v{t1}",
              f"v_mul_u32_u24 v{t2}, 6, v{t1}", f"v_sub_u32 v{t2}, v{t0}, v{t2}", f"v_lshl_add_u32 v{t2}, v{t2}, 4, s74",
              f"v_mul_u32_u24 v{t0}, 1152, v{t1}", f"v_add_u32 v{PRE_WQ[i]}, v{t0}, v{t2}",
              f"v_mul_u32_u24 v{t0}, 384, v{t1}", f"v_add_u32 v{PRE_WOA[i]}, v{t0}, v{t2}"]
    assert all((q * 171) >> 10 == q // 6 for q in range(192))
    L += [f"v_lshrrev_b32 v{t0}, 2, v{VL}", f"v_mul_u32_u24 v{t0}, 96, v{t0}", f"v_and_b32 v{t1}, 3, v{VL}", f"v_lshl_add_u32 v{t0}, v{t1}, 3, v{t0}",
          "s_mul_i32 s81, s28, 9216", f"s_add_u32 s81, s81, {L_STAGE}", f"v_add_u32 v{PRE_TR}, s81, v{t0}",
          f"v_mul_u32_u24 v{t0}, 1152, v{VT}", f"v_add_u32 v{PRE_TK}, v{vTk.pin}, v{t0}",
          f"v_lshl_add_u32 v{t0}, v{VG}, 3, v{t0}", f"s_add_u32 s60, s74, {L_T + 384}", f"v_add_u32 v{PRE_TV}, s60, v{t0}",
          f"v_add_u32 v{PRE_WS}, s75, v{vRd.pin}",
          f"v_lshrrev_b32 v{t0}, 2, v{VT}"]
    for r_ in range(4):
        L.append(f"v_cmp_eq_u32 s[{82 + 2 * r_}:{83 + 2 * r_}], {r_}, v{t0}")
    L += [f"v_cmp_eq_u32 s[90:91], 3, v{VG}", f"v_cmp_eq_u32 s[92:93], v{t0}, v{VG}", f"v_cmp_gt_u32 s[94:95], {NWIN - 16}, v{VT}",
          f"v_and_b32 v{t0}, 2, v{VT}", f"v_cmp_eq_u32 s[96:97], 0, v{t0}", f"v_and_b32 v245, 1, v{VT}", "v_lshlrev_b32 v245, 4, v245"]
    return L


def pre():
    B = Block("pre")
    li = lambda n, p: B.val(n, 1, pin=p, live_in=True)
    gH, gV, gD = [li("gH", p) for p in PRE_GH], [li("gV", p) for p in PRE_GV], [li("gD", p) for p in PRE_GD]
    dwa = [li("dwa", p) for p in PRE_DW]
    wqa, woa = [li("wqa", p) for p in PRE_WQ], [li("woa", p) for p in PRE_WOA]
    tr, tk, tv, wsa, hsh = li("tr", PRE_TR), li("tk", PRE_TK), li("tv", PRE_TV), li("ws", PRE_WS), li("hsh", 245)
    dw = [[B.val("dw") for c in range(3)] for i in range(3)]
    for i in range(3):
        for c in range(3):
            B.vml("buffer_load_ushort", dw[i][c], dwa[i], sDW, "0", 32 * c, tag="dw")
    lb = {}
    for a in range(2):
        for c in range(3):
            bd, b1, b2 = B.val("lbd", 2), B.val("lb1", 8), B.val("lb2", 8)
            B.vml("buffer_load_dwordx2", bd, gD[a], sX, "0", 32 * c)
            B.vml("buffer_load_dwordx4", b1[0:4], gH[a], sX, "0", 32 * c)
            B.vml("buffer_load_dwordx4", b1[4:8], gH[a], sX, "s77", 32 * c)
            B.vml("buffer_load_dwordx4", b2[0:4], gH[a], sX, "s78", 32 * c)
            B.vml("buffer_load_dwordx4", b2[4:8], gV[a], sX, "0", 32 * c)
            lb[a, c] = (bd, b1, b2)
    cm, dm0 = x_dma(B, [])
    rotate(B, [])
    tra = [tr, B.val("tr1"), B.val("tr2")]
    B.valu("v_add_u32 {0}, 36864, {1}", tra[1], tr)
    B.valu("v_add_u32 {0}, 73728, {1}", tra[2], tr)
    WOT = [[WOR if (c, k) == (0, 0) else B.val(f"wot{c}{k}", 4) for k in range(6)] for c in range(3)]
    stage_rd = {}

    def stage(i):
        m, half = divmod(i, 2)
        ops = []
        for q in range(9):
            if q % 3 == 0:
                rows = half * 96 + 32 * (q // 3)
                so = rows * 1152 + m * 384 if m < 3 else rows * 384
                B.salu(f"s_mov_b32 s98, {so}")
            B.salu(f"s_add_u32 m0, s81, {(i % 3) * 36864 + q * 1024}")
            d = B.dma((wqa if m < 3 else woa)[q % 3], sWQ if m < 3 else sWO, "s98", tag=f"stage{i}")
            for x in stage_rd.get(i - 3, []):
                B.dep(x, d, 0, "lgkm")
            ops.append(d)
        return ops

    def unstage(i, dmas):
        m, half = divmod(i, 2)
        dst = W["qkv"[m]] if m < 3 else WOT
        ops = []
        for b in range(6):
            wv, cc = 2 * half + b // 3, b % 3
            k, off = (wv, 2 * cc) if cc < 2 else (4 + (wv >> 1), 2 * (wv & 1))
            for c in range(3):
                o = B.dsr("ds_read_b64_tr_b16", dst[c][k][off:off + 2], tra[i % 3], b * 16 * 96 + c * 32, tag=f"unstage{i}")
                B.dep(dmas[-1], o, 0, "vm")
                ops.append(o)
        stage_rd[i] = ops

    st = {0: stage(0)}
    for c in range(3):
        t = B.val("cwt")
        for i, dstv in ((0, CW1[c]), (1, CW2[c])):
            if i == 0:
                one = B.val("one")
                B.valu("v_cndmask_b32 {0}, 0, 1.0, s[90:91]", one)
                B.valu("v_or_b32 {0}, {1}, {2}", dw[0][c], dw[0][c], one)
            for r_ in range(4):
                B.valu(f"v_cndmask_b32 {{0}}, 0, {{1}}, s[{82 + 2 * r_}:{83 + 2 * r_}]", t, dw[i][c])
                B.valu("v_accvgpr_write_b32 {0}, {1}", dstv[r_], t)
        B.valu("v_lshlrev_b32 {0}, {1}, {2}", dw[2][c], hsh, dw[2][c])
        B.valu("v_cndmask_b32 {0}, 0, {1}, s[92:93]", dw[2][c], dw[2][c])
        B.valu("v_cndmask_b32 {0}, 0, {1}, s[96:97]", t, dw[2][c])
        B.valu("v_accvgpr_write_b32 {0}, {1}", CWD[c][0], t)
        B.valu("v_cndmask_b32 {0}, {1}, 0, s[96:97]", t, dw[2][c])
        B.valu("v_accvgpr_write_b32 {0}, {1}", CWD[c][1], t)
    st[1] = stage(1)
    XL = X[1]
    for a in range(2):
        ms = [conv_mfmas(B, XL[a][c], c, lb[a, c][1], lb[a, c][2], lb[a, c][0], f"L{a}{c}") for c in range(3)]
        if a == 0:
            st[2] = stage(2)
    swr = ln1(B, XL[:2])
    for a in range(2):
        for c in range(3):
            B.salu(f"s_mov_b32 s98, {(3 * a + c) * 4096}")
            B.vms("buffer_store_dwordx4", XL[a][c], wsa, sWS, "s98", tag="stash")
    b = B.bar()
    B.before_bar(swr, b)
    srd, bwr = ln2_head(B)
    pend = list(srd)
    for a in range(2):
        rd, wr = ln2_tile(B, XL[a], a, 1 + a)
        pend += [rd] + wr
    cv = []
    for j in range(3):
        n0 = len(B.ops)
        cv.append(conv_tile(B, X[0][j], j))
        for o in cv[-1][2]:
            B.dep(dm0[-1], o, 0, "vm")
    cm, dm1 = x_dma(B, flat([c[2] for c in cv]))
    rotate(B, [])
    unstage(0, st[0])
    st[3] = stage(3)
    b = B.bar()
    B.before_bar(pend, b)
    swr = ln1(B, X[0])
    unstage(1, st[1])
    st[4] = stage(4)
    b = B.bar()
    B.before_bar(swr, b)
    srd, bwr = ln2_head(B)
    rd, wr = ln2_tile(B, X[0][0], 0, 0)
    unstage(2, st[2])
    st[5] = stage(5)
    HL = []
    hrd = []
    for a in range(2):
        h_, r_ = g_load(B, 1 + a)
        HL.append(h_)
        hrd += r_
    res = {}
    for a in range(2):
        for c in range(3):
            res["q", a, c] = B.val("rq", 2)
            g_chain(B, HL[a], "q", c, res["q", a, c], tag="Lq")
    unstage(3, st[3])
    st[6] = stage(6)
    for a in range(2):
        for c in range(3):
            res["k", a, c] = B.val("rk", 2)
            g_chain(B, HL[a], "k", c, res["k", a, c], tag="Lk")
    unstage(4, st[4])
    st[7] = stage(7)
    unstage(5, st[5])
    for a in range(2):
        for c in range(3):
            res["v", a, c] = B.val("rv", 2)
            g_chain(B, HL[a], "v", c, res["v", a, c], transposed=True, tag="Lv")
    unstage(6, st[6])
    unstage(7, st[7])
    b = B.bar()
    B.before_bar(wr + srd + [rd] + stage_rd[5] + stage_rd[6] + stage_rd[7], b)
    Hn, rn = g_load(B, 0, pins=H0_PIN, live_out=True)
    fin = []
    for a in range(2):
        if a == 1:
            B.salu("s_mov_b64 exec, s[94:95]")
        for c in range(3):
            fin.append(B.dsw("ds_write_b64", tk, res["k", a, c], a * 16 * 1152 + 8 * c))
            fin.append(B.dsw("ds_write_b64", tk, res["q", a, c], a * 16 * 1152 + 768 + 8 * c))
            fin.append(B.dsw("ds_write_b64", tv, res["v", a, c], a * 16 * 1152 + 32 * c))
    B.salu("s_mov_b64 exec, -1")
    for k in range(6):
        for c in range(3):
            if (c, k) != (0, 0):
                fin.append(B.dsw("ds_write_b128", vWo, WOT[c][k], wo_slot(c, k) * 1024))
    Qn = B.val("Q0n", 6, pin=Q0_PIN, live_out=True)
    Kn = B.val("K0n", 6, pin=K0_PIN, live_out=True)
    accn = B.val("accn", 4, pin=ACC_PIN, live_out=True)
    for c in range(3):
        g_chain(B, Hn, "q", c, Qn[2 * c:2 * c + 2], tag="qn")
    for c in range(2):
        g_chain(B, Hn, "k", c, Kn[2 * c:2 * c + 2], tag="kn")
    g_chain(B, Hn, "k", 2, None, acc=accn, tag="kn")
    b = B.bar()
    B.before_bar(fin + hrd + rn, b)
    B.schedule(linear=True, verbose=True)
    B.allocate(POOL, verbose=True)
    return B


POST_ST, POST_RD, POST_WS = [226, 227], 228, 229


def post_addr():
    t0, t1, t2 = 246, 247, 248
    L = lane_ids()
    for a in range(2):
        L += left_offsets(245, a, t0, t1, t2)
        L += [f"v_lshl_add_u32 v245, v{VG}, 3, v245", f"v_add_u32 v245, s74, v245", f"v_add_u32 v{POST_ST[a]}, {3 * ROWB + 3 * 384}, v245"]
    L += [f"v_mul_u32_u24 v{t0}, 1152, v{VT}", f"v_lshl_add_u32 v{t0}, v{VG}, 3, v{t0}", f"v_add_u32 v{POST_RD}, {L_T + 768}, v{t0}",
          f"v_add_u32 v{POST_WS}, s75, v{vRd.pin}"]
    return L


def post():
    B = Block("post")
    li = lambda n, p: B.val(n, 1, pin=p, live_in=True)
    st = [li("st", p) for p in POST_ST]
    rd0, wsa = li("rd", POST_RD), li("ws", POST_WS)
    rd1 = B.val("rd1")
    B.valu(f"v_add_u32 {{0}}, {16 * 1152}, {{1}}", rd1, rd0)
    prev = None
    for a in range(2):
        for c in range(3):
            s = B.salu(f"s_mov_b32 s{60 + 3 * a + c}, {(3 * a + c) * 4096}")
            l = B.vml("buffer_load_dwordx4", X[1][a][c], wsa, sWS, f"s{60 + 3 * a + c}", tag="unstash")
            B.dep(s, l, 4)

    def left_loader(addr):
        def ld(k):
            o0, o1 = (12 * k, 12 * k + 4) if k < 4 else (24 * (k - 4) + 8, 24 * (k - 4) + 20)
            v = B.val("ofl", 4)
            return v, [B.dsr("ds_read2_b64", v, addr, f" offset0:{o0} offset1:{o1}", occ=64)]
        return ld
    steps, ords = proj(B, [(X[0][j], o_loader(B, j)) for j in range(3)] + [(X[1][0], left_loader(rd0)), (X[1][1], left_loader(rd1))])
    for j in range(3):
        out_store(B, X[0][j], vSt[j], "s32")
    for a in range(2):
        out_store(B, X[1][a], st[a], "0")
    B.schedule(verbose=True)
    B.allocate(POOL, verbose=True)
    return B


def build(comments=False):
    ind = lambda L: ["  " + x for x in L]
    s0 = ind(setup())
    s1 = ind(consts() + pre_addr())
    bp = pre().lines(comments)
    b0 = body("first", 0, has_p=False).lines(comments) + ind(["s_mov_b32 s70, 10"])
    bodd = body("odd", 1).lines(comments) + ind(["s_sub_u32 s70, s70, 1", "s_cmp_eq_u32 s70, 0", "s_cbranch_scc1 L_last"])
    bev = body("even", 0).lines(comments) + ind(["s_branch L_loop"])
    bl = body("last", 0, has_next=False).lines(comments)
    pa = ind(post_addr())
    po = post().lines(comments)
    paths = [[s0, s1, bp, b0, bodd, bev, bodd, bl, pa, po]]
    n = check.fix_hazards(paths)
    print("inserted nops:", n)
    for p_ in paths:
        errs = check.check_waits(p_)
        assert not errs, "\n".join(errs[:20])
    ref = open(os.path.join(os.path.dirname(os.path.abspath(__file__)), "..", NAME + ".s.ref")).read()
    head = ref[:ref.index("; Override launch")]
    out = [head.rstrip(), f"; @launch grid=(256,1,1) block=(256,1,1) lds={LDS_BYTES}",
           "; generated by gen/kernel.py", '.amdgcn_target "amdgcn-amd-amdhsa--gfx950"', ".text", f".globl {NAME}_kernel", ".p2align 8",
           f".type {NAME}_kernel,@function", f"{NAME}_kernel:"]
    out += s0 + ["L_restart:"] + s1 + bp + b0 + [".p2align 6", "L_loop:"] + bodd + bev + ["L_last:"] + bl + pa + po
    out += ["L_exit:", "  s_endpgm", '.section .rodata,"a"', ".p2align 6", f".amdhsa_kernel {NAME}_kernel",
            "  .amdhsa_next_free_vgpr 512", "  .amdhsa_next_free_sgpr 102", "  .amdhsa_accum_offset 256",
            "  .amdhsa_group_segment_fixed_size 0", "  .amdhsa_kernarg_size 56", "  .amdhsa_user_sgpr_count 2",
            "  .amdhsa_user_sgpr_kernarg_segment_ptr 1", "  .amdhsa_system_sgpr_workgroup_id_x 1", ".end_amdhsa_kernel", ""]
    return "\n".join(out)


if __name__ == "__main__":
    dst = sys.argv[1] if len(sys.argv) > 1 else os.path.join(os.path.dirname(os.path.abspath(__file__)), "..", NAME + ".s")
    txt = build(comments="-c" in sys.argv)
    open(dst, "w").write(txt)
    print("wrote", dst, len(txt), "bytes")
```

```python
import random

MFMA_KINDS = ("m32", "m16", "sm")
VALU_KINDS = ("valu", "trans", "perm")
DS_KINDS = ("dsr", "dsw")
VM_KINDS = ("vml", "vms", "dma")
SC_KINDS = ("salu", "bar", "wait", "nop")


class Val:
    def __init__(self, name, n=1, cls="v", pin=None, live_in=False, live_out=False, ready=0, persistent=False):
        self.name, self.n, self.cls, self.pin = name, n, cls, pin
        self.live_in, self.live_out, self.ready, self.persistent = live_in, live_out, ready, persistent
        self.phys = pin

    def __getitem__(self, k):
        if isinstance(k, slice):
            a = k.start or 0
            b = self.n if k.stop is None else k.stop
            return Ref(self, a, b - a)
        return Ref(self, k, 1)

    def all(self):
        return Ref(self, 0, self.n)

    def __repr__(self):
        return f"<{self.name}:{self.n}>"


class Ref:
    def __init__(self, val, off, n, span=None):
        self.val, self.off, self.n, self.span = val, off, n, span or n

    def wide(self, span):
        return Ref(self.val, self.off, self.n, span)

    def keys(self):
        return [(self.val, self.off + i) for i in range(self.n)]

    def text(self):
        p = self.val.phys + self.off
        c = self.val.cls
        return f"{c}{p}" if self.span == 1 else f"{c}[{p}:{p + self.span - 1}]"


def R(x):
    return x.all() if isinstance(x, Val) else x


class V6:
    def __init__(self, B, name, pin=None, **kw):
        self.a = B.val(name + "a", 4, pin=None if pin is None else pin[0], **kw)
        self.b = B.val(name + "b", 2, pin=None if pin is None else pin[1], **kw)

    def __getitem__(self, k):
        if k.stop <= 4:
            return self.a[k]
        assert k.start >= 4
        return self.b[k.start - 4:k.stop - 4]

    def has(self, v):
        return v is self.a or v is self.b


class Op:
    def __init__(self, kind, fmt, args=(), defs=(), uses=(), cuse=None, slots=1, occ=0, tag=""):
        self.kind, self.fmt, self.args = kind, fmt, [R(a) if isinstance(a, (Val, Ref)) else a for a in args]
        self.defs = [R(d) for d in defs]
        self.uses = [R(u) for u in uses]
        self.cuse = R(cuse) if cuse is not None else None
        self.slots, self.occ, self.tag = slots, occ, tag
        self.preds = []
        self.succs = []
        self.window = None
        self.not_before = None
        self.t = None
        self.idx = None
        self.dl = None
        self.bonus = 0
        self.external = False
        self.lines = 0
        self.taq = None
        self.hbm = 0
        self.due = None
        self.drain = False
        self.lat = None

    def text(self):
        return self.fmt.format(*[a.text() if isinstance(a, Ref) else a for a in self.args])


class Block:
    LDS_LAT = 72
    VM_LAT = 700
    quad_base = 0
    MAX_LINES = 256
    TA_Q = {"vms": 0, "dma": 200, "vml": 200}

    def __init__(self, name):
        self.name = name
        self.ops = []
        self.last_w = {}
        self.readers = {}
        self.last_salu = None
        self.vals = []
        self.ext = []
        self.out = None

    def val(self, name, n=1, cls="v", **kw):
        v = Val(name, n, cls, **kw)
        self.vals.append(v)
        return v

    def ext_vm(self, done, lines=0):
        o = Op("dma", "; external")
        o.external = True
        o.t = -1000
        o.done = done
        o.lines = lines
        o.qi = len(self.ext)
        self.ext.append(o)
        return o

    def dep(self, a, b, lat=0, mode=""):
        if a is b:
            return
        b.preds.append((a, lat, mode))
        a.succs.append((b, lat, mode))

    @staticmethod
    def cost(op):
        k = op.kind
        if k in MFMA_KINDS:
            return 4
        if k == "valu":
            return 4
        if k in ("trans", "perm"):
            return 8
        if k in DS_KINDS or k in VM_KINDS:
            return 4 * op.slots
        return 4

    def _raw(self, p, c, as_c):
        pk, ck = p.kind, c.kind
        if pk in MFMA_KINDS:
            if as_c:
                return self.dep(p, c, 4 if pk == ck else 28)
            return self.dep(p, c, 36)
        if pk == "dsr":
            return self.dep(p, c, 0, "lgkm")
        if pk == "vml":
            return self.dep(p, c, 0, "vm")
        if pk in VALU_KINDS:
            lat = self.cost(p)
            if ck in MFMA_KINDS or ck == "perm":
                lat += 8
            elif pk == "trans":
                lat += 4
            return self.dep(p, c, lat)
        return self.dep(p, c, 4)

    def add(self, op):
        self.ops.append(op)
        for u in op.uses:
            for k in u.keys():
                if k in self.last_w:
                    self._raw(self.last_w[k], op, False)
        if op.cuse is not None:
            for k in op.cuse.keys():
                if k in self.last_w:
                    self._raw(self.last_w[k], op, True)
        allu = list(op.uses) + ([op.cuse] if op.cuse is not None else [])
        for d in op.defs:
            for k in d.keys():
                for r in self.readers.get(k, ()):
                    self.dep(r, op, 4)
                w = self.last_w.get(k)
                if w is not None:
                    if w.kind in MFMA_KINDS and op.kind not in MFMA_KINDS:
                        self.dep(w, op, 36)
                    elif w.kind == "dsr":
                        self.dep(w, op, 0, "lgkm")
                    elif w.kind == "vml":
                        self.dep(w, op, 0, "vm")
                    else:
                        self.dep(w, op, 4)
        for u in allu:
            for k in u.keys():
                self.readers.setdefault(k, []).append(op)
        for d in op.defs:
            for k in d.keys():
                self.last_w[k] = op
                self.readers[k] = []
        if op.kind == "salu":
            if self.last_salu is not None:
                self.dep(self.last_salu, op, 4)
            self.last_salu = op
        return op

    def mfma(self, kind, d, a, b, c=None, idx=None, tag=""):
        d, a, b = R(d), R(a), R(b)
        if kind == "sm":
            return self.add(Op("sm", "v_smfmac_f32_16x16x64_bf16 {0}, {1}, {2}, {3}", [d, a, b, idx], [d], [a, b, idx], cuse=d, tag=tag))
        nm = "v_mfma_f32_16x16x32_bf16" if kind == "m32" else "v_mfma_f32_16x16x16_bf16"
        if c is None:
            return self.add(Op(kind, nm + " {0}, {1}, {2}, 0", [d, a, b], [d], [a, b], tag=tag))
        c = R(c)
        return self.add(Op(kind, nm + " {0}, {1}, {2}, {3}", [d, a, b, c], [d], [a, b], cuse=c, tag=tag))

    def valu(self, fmt, d, *srcs, kind="valu", rmw=False, tag=""):
        uses = [s for s in srcs if isinstance(s, (Val, Ref))]
        if rmw:
            uses = uses + [d]
        defs = [d] if isinstance(d, (Val, Ref)) else []
        return self.add(Op(kind, fmt, [d, *srcs], defs, uses, tag=tag))

    def swap(self, which, a, b, tag=""):
        return self.add(Op("perm", f"v_permlane{which}_swap_b32 {{0}}, {{1}}", [a, b], [a, b], [a, b], tag=tag))

    def dsr(self, mn, d, addr, off="", occ=None, window=10, tag=""):
        d = R(d)
        if occ is None:
            occ = 16 if d.n >= 4 else 8
        if isinstance(off, int):
            assert 0 <= off < 65536, off
            off = f" offset:{off}" if off else ""
        o = self.add(Op("dsr", mn + " {0}, {1}" + off, [d, addr], [d], [addr], slots=1, occ=occ, tag=tag))
        o.window = window
        return o

    def dsw(self, mn, addr, s, off=0, tag=""):
        s = R(s)
        assert 0 <= off < 65536, off
        occ = {1: 16, 2: 28, 3: 40, 4: 52}[s.n]
        return self.add(Op("dsw", mn + " {0}, {1}" + (f" offset:{off}" if off else ""), [addr, s], [], [addr, s], slots=1 + s.n, occ=occ, tag=tag))

    def vml(self, mn, d, addr, srd, soff="0", off=0, extra="", tag="", occ=72):
        assert 0 <= off < 4096
        return self.add(Op("vml", f"{mn} {{0}}, {{1}}, {srd}, {soff} offen" + (f" offset:{off}" if off else "") + extra, [d, addr], [d], [addr], slots=2, occ=occ, tag=tag))

    def vms(self, mn, s, addr, srd, soff="0", off=0, extra="", tag="", occ=264):
        s = R(s)
        assert 0 <= off < 4096
        return self.add(Op("vms", f"{mn} {{0}}, {{1}}, {srd}, {soff} offen" + (f" offset:{off}" if off else "") + extra, [s, addr], [], [s, addr], slots=1 + s.n, occ=occ, tag=tag))

    def dma(self, addr, srd, soff, off=0, extra="", tag=""):
        assert 0 <= off < 4096
        return self.add(Op("dma", f"buffer_load_dwordx4 {{0}}, {srd}, {soff} offen" + (f" offset:{off}" if off else "") + extra + " lds", [addr], [], [addr], slots=2, occ=72, tag=tag))

    def salu(self, text, tag=""):
        return self.add(Op("salu", text.replace("{", "{{").replace("}", "}}"), tag=tag))

    def bar(self, tag=""):
        return self.add(Op("bar", "s_barrier", tag=tag))

    def before_bar(self, ops, bar):
        for o in ops:
            mode = "lgkm" if o.kind in DS_KINDS else ("vm" if o.kind in VM_KINDS else "")
            self.dep(o, bar, 4, mode)

    def after(self, first, ops, lat=4, mode=""):
        for o in ops:
            self.dep(first, o, lat, mode)

    def schedule(self, backbone=None, linear=False, vm_pending=0, end_wait=True, verbose=False, throttle=20, drain=200, limit=None, holes=()):
        ops = self.ops
        if linear:
            backbone = list(ops)
        else:
            if backbone is None:
                backbone = [o for o in ops if o.kind in MFMA_KINDS or o.kind == "bar"]
            want = {id(o) for o in ops if o.kind in MFMA_KINDS or o.kind == "bar"}
            got = [id(o) for o in backbone]
            assert len(set(got)) == len(got), "duplicate backbone op"
            assert want <= set(got), f"backbone misses {len(want - set(got))} ops"
        bpos = {id(o): i for i, o in enumerate(backbone)}
        T = []
        t = 0
        for o in backbone:
            T.append(t)
            t += 16 if o.kind in MFMA_KINDS else 4
        Tend = t
        INF = 10 ** 9
        order = self._topo()
        for o in reversed(order):
            if id(o) in bpos:
                o.dl = T[bpos[id(o)]]
                o.first_bb = bpos[id(o)]
                continue
            dl = Tend
            fb = len(backbone)
            for s, lat, mode in o.succs:
                l = lat
                if mode == "lgkm":
                    l = self.LDS_LAT + o.occ + 16
                elif mode == "vm":
                    l = (o.lat or self.VM_LAT) + o.occ
                if id(s) not in bpos:
                    l += self.cost(o)
                dl = min(dl, s.dl - l)
            if o.due is not None:
                dl = min(dl, T[bpos[id(o.due[0])]] + o.due[1])
            o.dl = dl
        for o in ops:
            o.rel = o.dl
            o.dl -= o.bonus
            o.t = None
            o.npred = sum(not p[0].external for p in o.preds)
        counted = lambda v: v.cls == "v" and not v.persistent and v.pin not in holes
        left, live = {}, set()
        for o in ops:
            o.vs = {r.val for r in o.defs + o.uses + ([o.cuse] if o.cuse is not None else []) if counted(r.val)}
            for v in o.vs:
                left[v] = left.get(v, 0) + 1
        for v in self.vals:
            if v.live_in and counted(v) and v in left:
                live.add(v)
        nlive = [sum(v.n for v in live)]

        def over(o):
            if limit is None:
                return False
            new = sum(v.n for v in o.vs if v not in live)
            if not new:
                return False
            freed = sum(v.n for v in o.vs if v in live and left[v] == 1 and not v.live_out)
            return new > freed and nlive[0] + new > limit
        out = []
        st = dict(t=0, pipe=0, valu_ok=0, mem_ok=0, mfma_ok=0, lastk=None, lds=0, ta=0)
        dsq = []
        ds_done = [0]
        vmq = list(self.ext)
        st["vmlast"] = st["hbm"] = max([o.done for o in self.ext], default=0)
        vm_done = [0]
        fill = [o for o in ops if id(o) not in bpos]
        avail = [o for o in fill if o.npred == 0]
        nfill = len(fill)
        bi = 0
        stall_log = []

        def covered(p, mode):
            if mode == "lgkm":
                return p.qi < ds_done[0]
            return p.qi < vm_done[0]

        def ready_time(o):
            rt = 0
            need = []
            for p, lat, mode in o.preds:
                if mode:
                    if not covered(p, mode):
                        need.append((p, mode))
                        rt = max(rt, p.done)
                else:
                    rt = max(rt, p.t + lat)
            for u in o.uses + o.defs + ([o.cuse] if o.cuse is not None else []):
                if u.val.live_in and u.val.ready:
                    rt = max(rt, u.val.ready)
            return rt, need

        def emit_wait(need):
            lg = max([p.qi for p, m in need if m == "lgkm"], default=None)
            vm = max([p.qi for p, m in need if m == "vm"], default=None)
            parts = []
            tdone = st["t"]
            if vm is not None:
                n = len(vmq) - 1 - vm
                assert n <= 63
                parts.append(f"vmcnt({n})")
                vm_done[0] = max(vm_done[0], vm + 1)
                tdone = max(tdone, vmq[vm].done if vmq[vm] is not None else 0)
            if lg is not None:
                n = len(dsq) - 1 - lg
                if n > 15:
                    n = 15
                    lg = len(dsq) - 1 - 15
                parts.append(f"lgkmcnt({n})")
                ds_done[0] = max(ds_done[0], lg + 1)
                tdone = max(tdone, dsq[lg].done)
            w = Op("wait", "s_waitcnt " + " ".join(parts))
            w.t = st["t"]
            out.append(w)
            st["t"] = max(st["t"] + 4, tdone)

        def start_time(o, rt):
            k = o.kind
            s = max(st["t"], rt)
            if k in MFMA_KINDS:
                p = st["pipe"]
                if st["lastk"] is not None and ((st["lastk"] == "m16") != (k == "m16")):
                    p += 4
                s = max(s, p, st["mfma_ok"])
            elif k in VALU_KINDS:
                s = max(s, st["valu_ok"])
            elif k in DS_KINDS or k in VM_KINDS:
                s = max(s, st["mem_ok"])
            return s

        def issue(o, s):
            k = o.kind
            o.t = s
            out.append(o)
            for v in o.vs:
                if v not in live:
                    live.add(v)
                    nlive[0] += v.n
                left[v] -= 1
                if left[v] == 0 and not v.live_out:
                    live.remove(v)
                    nlive[0] -= v.n
            c = self.cost(o)
            if k in MFMA_KINDS:
                if s > st["pipe"] and st["lastk"] is not None:
                    stall_log.append((bpos.get(id(o)), s - st["pipe"], o.tag))
                st["pipe"] = s + 16
                st["lastk"] = k
                st["valu_ok"] = s + {"m32": 8, "m16": 4, "sm": 12}[k]
                st["mem_ok"] = max(st["mem_ok"], s + {"m32": 8, "m16": 4, "sm": 8}[k])
                st["t"] = s + 4
            elif k in VALU_KINDS:
                st["t"] = s + c
                st["mem_ok"] = max(st["mem_ok"], s + c + 8)
            elif k in DS_KINDS:
                st["t"] = s + c
                o.qi = len(dsq)
                dsq.append(o)
                st["lds"] = max(st["lds"], s) + o.occ
                o.done = st["lds"] + self.LDS_LAT
            elif k in VM_KINDS:
                o.qi = len(vmq)
                vmq.append(o)
                st["ta"] = max(st["ta"], s) + o.occ
                o.done = max(st["ta"] + (o.lat or self.VM_LAT), st["vmlast"] + o.occ)
                if o.hbm:
                    st["hbm"] = max(st["hbm"] + o.hbm, st["ta"] + (o.lat or self.VM_LAT))
                    o.done = max(o.done, st["hbm"])
                st["vmlast"] = o.done
                if k == "vms":
                    st["t"] = s + c - 4
                    st["mfma_ok"] = s + c
                else:
                    st["t"] = s + c
            elif k == "bar":
                st["t"] = s + 12
            else:
                st["t"] = s + 4
                if getattr(o, "vm_all", False):
                    vm_done[0] = len(vmq)
            for sx, lat, mode in o.succs:
                sx.npred -= 1
                if sx.npred == 0 and id(sx) not in bpos:
                    avail.append(sx)
                    if drain is not None and sx.drain:
                        sx.dl = min(sx.dl, T[min(bi, len(T) - 1)] + drain)

        def released(o):
            if o.not_before is not None and o.not_before.t is None:
                return False
            if o.window is not None:
                tb = T[bi] if bi < len(backbone) else Tend
                return o.rel - 16 * o.window <= tb
            return True

        guard = 0
        force_next = False
        while bi < len(backbone) or nfill:
            guard += 1
            assert guard < 200000, "scheduler stuck"
            M = backbone[bi] if bi < len(backbone) else None
            tM = None
            needM = []
            force, force_next = force_next, False
            if M is not None and M.npred == 0 and (force or not over(M)):
                rt, needM = ready_time(M)
                tM = start_time(M, rt)
            now = st["t"]
            scalar_slot = now < min(st["valu_ok"], st["mem_ok"]) and (tM is None or tM > now or needM)
            scalar_slot = scalar_slot or (out and out[-1].kind in ("m32", "sm"))
            if scalar_slot and not linear:
                need = []
                j = bi
                while j < len(backbone):
                    b = backbone[j]
                    for p, lat, mode in b.preds:
                        if mode and p.t is not None and not covered(p, mode) and (p.done <= now + 4):
                            need.append((p, mode))
                    if b.kind in ("m32", "sm"):
                        break
                    j += 1
                for o in avail:
                    if o.kind == "salu" or not released(o):
                        continue
                    nd = [(p, m) for p, lat, m in o.preds if m and not covered(p, m)]
                    if nd and all(p.done <= now + 4 for p, m in nd):
                        need += nd
                if need and out[-1].kind != "wait":
                    emit_wait(need)
                    continue
            best = None
            cands = []
            for o in avail:
                if not released(o) or (over(o) and not force):
                    continue
                rt, need = ready_time(o)
                if need:
                    continue
                if o.kind in DS_KINDS and len(dsq) >= 15 and dsq[-15].done > now:
                    rt = max(rt, dsq[-15].done)
                s = start_time(o, rt)
                if o.kind in DS_KINDS and st["lds"] - s > throttle:
                    s = st["lds"] - throttle
                    s += (-s) % 4
                if o.kind in VM_KINDS:
                    if len(vmq) - vm_done[0] >= 60:
                        continue
                    lim = self.TA_Q[o.kind] if o.taq is None else o.taq
                    if st["ta"] - s > lim:
                        s = st["ta"] - lim
                        s += (-s) % 4
                    if o.lines:
                        tot = o.lines
                        for x in reversed(vmq):
                            if x.done <= s:
                                break
                            tot += x.lines
                            if tot > self.MAX_LINES:
                                s = x.done + (-x.done) % 4
                                break
                cands.append((o, s))
            lim_t = tM if (tM is not None and not needM) else None
            if lim_t is not None:
                fits = []
                for o, s in cands:
                    c = self.cost(o)
                    if o.kind == "salu":
                        if s == now and scalar_slot and now < lim_t:
                            fits.append((o, s, 0))
                        continue
                    e = s + c
                    if e <= lim_t:
                        fits.append((o, s, 1))
                    elif (o.kind in DS_KINDS or o.kind in VM_KINDS) and o.slots > 2 and s <= st["pipe"] - 8 and s + 8 <= lim_t:
                        fits.append((o, s, 1))
                if fits:
                    sal = [f for f in fits if f[2] == 0]
                    if sal:
                        best = min(sal, key=lambda f: f[0].dl)
                    else:
                        smin = min(f[1] for f in fits)
                        first = [f for f in fits if f[1] == smin]
                        mem = [f for f in first if f[0].kind in DS_KINDS or f[0].kind in VM_KINDS]
                        if mem:
                            bm = min(mem, key=lambda f: f[0].dl)
                            bv = min(first, key=lambda f: f[0].dl)
                            tb = T[bi]
                            best = bm if (bm[0].dl <= bv[0].dl + 64 or bv[0].dl > tb + 32) else bv
                        else:
                            best = min(first, key=lambda f: f[0].dl)
                if best is not None:
                    o, s = best[0], best[1]
                    avail.remove(o)
                    nfill -= 1
                    issue(o, s)
                    continue
                issue(M, tM)
                bi += 1
                continue
            acts = []
            horizon = None
            if tM is not None and needM:
                tw = max(p.done for p, m in needM)
                horizon = max(tw, tM - 4)
            for o, s_ in cands:
                if horizon is None or s_ + self.cost(o) <= horizon:
                    acts.append((s_, o.dl, "issue", o))
            if not linear:
                for o in avail:
                    if released(o) and (force or not over(o)):
                        rt, need = ready_time(o)
                        if need:
                            s_ = max(now + 4, rt)
                            if horizon is None or s_ + 24 < horizon:
                                acts.append((s_, o.dl, "wait", need))
            if acts:
                smin = min(x[0] for x in acts)
                near = [x for x in acts if x[0] <= smin + 8]
                best = min(near, key=lambda x: x[1])
                if best[2] == "issue" and best[0] > smin:
                    mem = best[3].kind in DS_KINDS + VM_KINDS
                    pre = [x for x in near if x[2] == "issue" and x[0] + self.cost(x[3]) <= best[0] and not (mem and x[3].kind in VALU_KINDS)]
                    if pre:
                        best = min(pre, key=lambda x: x[1])
                if best[2] == "issue":
                    avail.remove(best[3])
                    nfill -= 1
                    issue(best[3], best[0])
                else:
                    emit_wait(best[3])
                continue
            if horizon is not None:
                emit_wait(needM)
                continue
            if not force and limit is not None and ((M is not None and M.npred == 0) or any(released(o) and over(o) for o in avail)):
                force_next = True
                continue
            waiting = [o for o in avail if not (o.not_before is not None and o.not_before.t is None)]
            assert waiting, f"deadlock in {self.name} at backbone {bi} {M.tag if M else ''}"
            rel = [o for o in waiting if released(o)]
            if rel:
                emit_wait([(vmq[vm_done[0]], "vm")])
            else:
                min(waiting, key=lambda o: o.dl).window = None
        if end_wait and ds_done[0] < len(dsq):
            emit_wait([(dsq[-1], "lgkm")])
        self.out = out
        self.cycles = max(st["t"], st["pipe"])
        self.stalls = stall_log
        self.vm_left = len(vmq) - vm_done[0]
        for i, o in enumerate(out):
            o.idx = i
        if verbose:
            nm = sum(o.kind in MFMA_KINDS for o in out)
            print(f"[{self.name}] {len(out)} instrs, {nm} mfma, est {self.cycles} cyc (floor {16 * nm}), stalls {sum(s[1] for s in stall_log)}")
        return out

    def _topo(self):
        n = {id(o): sum(not p[0].external for p in o.preds) for o in self.ops}
        q = [o for o in self.ops if n[id(o)] == 0]
        res = []
        while q:
            o = q.pop()
            res.append(o)
            for s, _, _ in o.succs:
                n[id(s)] -= 1
                if n[id(s)] == 0:
                    q.append(s)
        assert len(res) == len(self.ops), "dependency cycle"
        return res

    def intervals(self):
        iv = {}
        N = len(self.out)
        for o in self.out:
            refs = o.defs + o.uses + ([o.cuse] if o.cuse is not None else [])
            for r in refs:
                v = r.val
                if v.persistent:
                    continue
                a, b = iv.get(v, (o.idx, o.idx))
                iv[v] = (min(a, o.idx), max(b, o.idx))
        for v in self.vals:
            if v.persistent:
                continue
            if v not in iv:
                if v.live_in or v.live_out:
                    iv[v] = (-1, N) if (v.live_in and v.live_out) else ((-1, -1) if v.live_in else (N, N))
                else:
                    continue
            a, b = iv[v]
            if v.live_in:
                a = -1
            if v.live_out:
                b = N
            iv[v] = (a, b)
        return iv

    def allocate(self, pools, tries=400, verbose=False):
        iv = self.intervals()
        N = len(self.out)
        press = [0] * (N + 2)
        for v, (a, b) in iv.items():
            if v.cls == "v":
                for i in range(a + 1, b + 2):
                    press[i] += v.n
        self.maxpress = max(press)
        self.press = press
        if verbose == 2:
            step = max(1, N // 60)
            print("pressure:", " ".join(str(max(press[i:i + step])) for i in range(0, N, step)))
            pk = press.index(self.maxpress) - 1
            print("peak at", pk, self.out[max(0, pk)].t, sorted(f"{v.name}:{v.n}" for v, (a, b) in iv.items() if a <= pk <= b and v.cls == "v"))
        fixed = [v for v in iv if v.pin is not None]
        dyn = [v for v in iv if v.pin is None]
        rng = random.Random(1)
        for attempt in range(tries):
            occ = {}
            ok = True

            def free(cls, p, n, a, b):
                for r in range(p, p + n):
                    if r not in pools[cls]:
                        return False
                    for (x, y) in occ.get((cls, r), ()):
                        if not (b < x or y < a):
                            return False
                return True

            def take(v, p):
                a, b = iv[v]
                for r in range(p, p + v.n):
                    occ.setdefault((v.cls, r), []).append((a, b))
                v.phys = p

            for v in fixed:
                a, b = iv[v]
                for r in range(v.pin, v.pin + v.n):
                    for (x, y) in occ.get((v.cls, r), ()):
                        assert b < x or y < a, f"pinned overlap {v} in {self.name}"
                take(v, v.pin)
            mode = attempt % 4
            jit = (lambda: 0) if attempt < 4 else (lambda: rng.random())
            if mode == 0:
                order = sorted(dyn, key=lambda v: (-v.n, iv[v][0] + 30 * jit()))
            elif mode == 1:
                order = sorted(dyn, key=lambda v: (v.n < 8, v.n < 4, iv[v][1] - iv[v][0] < 150 + 100 * jit(), iv[v][0]))
            elif mode == 2:
                order = sorted(dyn, key=lambda v: (v.n < 4, -(iv[v][1] - iv[v][0]) * (1 + jit()) * (4 if v.n >= 8 else 1)))
            else:
                order = sorted(dyn, key=lambda v: (-v.n, -iv[v][1] + 30 * jit()))
            plist = sorted(pools["v"])
            base = self.quad_base
            for v in order:
                a, b = iv[v]
                best = None
                for al in ((4, 2) if v.n >= 4 else (2,) if v.n > 1 else (1,)):
                    for p in plist:
                        if (p - base) % al:
                            continue
                        if free(v.cls, p, v.n, a, b):
                            gap = 0
                            for r in range(p, p + v.n):
                                oc = occ.get((v.cls, r), ())
                                prev = max([y for (x, y) in oc if y < a], default=-300)
                                nxt = min([x for (x, y) in oc if x > b], default=N + 300)
                                gap += min(a - prev, 300) + min(nxt - b, 300)
                            gap /= v.n
                            if v.n < 4:
                                q = p - (p - base) % 4
                                if free(v.cls, q, 4, a, b):
                                    gap += 1000
                                elif v.n == 1 and free(v.cls, p - p % 2, 2, a, b):
                                    gap += 500
                            gap += 40 * jit()
                            if best is None or gap < best[0]:
                                best = (gap, p)
                    if best is not None:
                        break
                if best is None:
                    ok = False
                    fail = v
                    break
                take(v, best[1])
            if ok:
                if verbose:
                    print(f"[{self.name}] allocated (attempt {attempt}), max v pressure {self.maxpress} of {len(pools['v'])}")
                return True
        raise RuntimeError(f"[{self.name}] allocation failed at {fail} {iv[fail]}; max pressure {self.maxpress} of {len(pools['v'])}")

    def lines(self, comments=False):
        res = []
        for o in self.out:
            s = "  " + o.text()
            if comments and o.tag:
                s += f"  ; {o.tag} @{o.t}"
            res.append(s)
        return res
```

```python
import sys, os, struct, math
sys.path.insert(0, os.path.dirname(os.path.abspath(__file__)))
from core import *
import check

NAME = "standalone__window_attn_davit__vision"
ROWB = 196224
XBYTES = 100270464
SHIFT = 0x30000
OOB = 0x10000000
NWIN = 21
PERX = 667
XOPT = {a[2:].split("=")[0]: (a.split("=")[1] if "=" in a else True) for a in sys.argv if a.startswith("-x")}
NRES = int(XOPT.get("nres", 3))
NT = {"0": "", "1": " nt"}[XOPT.get("nt", "0")]
STF = {"0": "", "nt": " nt", "sc1": " sc1", "sc0sc1": " sc0 sc1", "sc1nt": " sc1 nt"}[XOPT.get("stf", "0")]
TS = 1160
LDS_BYTES = 163840
L_S, L_H, L_O = 0, 2048, 20480
L_T = 38912
L_WO = (L_T + NWIN * TS + 15) // 16 * 16
WO_W = (18 - NRES) * 1024
L_FLAG = LDS_BYTES - 128
L_X = L_FLAG - 4 * 7936
assert L_WO + 4 * WO_W <= L_X
L_STAGE, STAGE_W = L_O, 27872
assert L_STAGE + 4 * STAGE_W <= L_X
WS_PER_WG = 65536


def f32(x):
    return "0x%08x" % struct.unpack("<I", struct.pack("<f", x))[0]


ALPHA = math.sqrt(48 ** -0.5 * math.log2(math.e))

def token_map():
    byres = {r: [] for r in range(8)}
    for y in range(7):
        for x in range(7):
            if (y, x) != (3, 3):
                byres[(x + y) % 8].append((y, x))
    sets = [[byres[r][s] for r in range(8)] for s in range(6)]
    tok = []
    for j in range(3):
        a, b = sorted(sets[2 * j]), sorted(sets[2 * j + 1])
        tok.append(a[:4] + b + a[4:])
    return tok


TOK = token_map()

def P(name, n, cls, pin):
    return Val(name, n, cls, pin=pin, persistent=True)


vIdx, vGuard, vCm = P("idx", 1, "v", 0), P("guard", 1, "v", 1), P("cmask", 1, "v", 2)
cH = [P(f"cH{j}", 1, "v", 3 + j) for j in range(3)]
cV = [P(f"cV{j}", 1, "v", 6 + j) for j in range(3)]
cD = [P(f"cD{j}", 1, "v", 9 + j) for j in range(3)]
vSt = [P(f"st{j}", 1, "v", 12 + j) for j in range(3)]
vRd, vWr4, vWr2, vWo = P("rd", 1, "v", 15), P("wr4", 1, "v", 16), P("wr2", 1, "v", 17), P("wo", 1, "v", 18)
vTk, vTv, vDma = P("tk", 1, "v", 19), P("tv", 1, "v", 20), P("dma", 1, "v", 21)
vStM, vStX = P("stm", 1, "v", 22), P("stx", 1, "v", 23)
vPf, vSink = P("pf", 1, "v", 24), P("sink", 1, "v", 25)
X = [[[P(f"X{p}{j}{c}", 4, "v", 26 + 36 * p + 12 * j + 4 * c) for c in range(3)] for j in range(3)] for p in range(2)]
_b = 98 + 4 * (NRES - 1)
V2_PIN = [_b, _b + 4, _b + 8]
vSw, vBw, vBr = P("sw", 1, "v", _b + 3), P("bw", 1, "v", _b + 7), P("br", 1, "v", _b + 11)
P2_PIN = [_b + 12, _b + 16]
ZREGS = [_b + 15, _b + 19]
H0_PIN = [_b + 20 + 4 * k for k in range(6)]
Q0_PIN, K0_PIN, ACC_PIN = (_b + 44, _b + 56), (_b + 48, _b + 58), _b + 52
Block.quad_base = _b % 4
POOL = {"v": set(range(_b, 256)) - {_b + 3, _b + 7, _b + 11, _b + 15, _b + 19}, "a": set()}

W = {m: [[P(f"W{m}{c}{k}", 4, "a", 72 * i + 24 * c + 4 * k) for k in range(6)] for c in range(3)] for i, m in enumerate("qkv")}
CW1 = [P(f"cw1{c}", 4, "a", 216 + 10 * c) for c in range(3)]
CW2 = [P(f"cw2{c}", 4, "a", 220 + 10 * c) for c in range(3)]
CWD = [P(f"cwd{c}", 2, "a", 224 + 10 * c) for c in range(3)]
ONES = P("ones", 4, "a", 246)
WOR = [P("wores0", 4, "a", 250)] + [P(f"wores{i}", 4, "v", 98 + 4 * (i - 1)) for i in range(1, NRES)]

sX, sOUT, sWS, sWQ, sWO, sDW = "s[4:7]", "s[8:11]", "s[12:15]", "s[16:19]", "s[20:23]", "s[24:27]"
MG0, MG1 = "s[54:55]", "s[56:57]"

CVT = "v_cvt_pk_bf16_f32 {0}, {1}, {2}"


def wo_slot(c, k):
    assert NRES == 3
    return 3 * {0: -1, 1: 0, 4: 1, 2: 2, 3: 3, 5: 4}[k] + c


def g_load(B, slot, pins=None, live_out=False, window=int(XOPT.get('wh', 4)), host=None):
    H, ops = [], []
    for k in range(6):
        v = host.pop() if host else B.val(f"H{slot}_{k}", 4, pin=pins[k] if pins else None, live_out=live_out)
        ops.append(B.dsr("ds_read_b128", v, vRd, L_H + slot * 6144 + k * 1024, window=window, tag=f"H{slot}.{k}"))
        H.append(v)
    return H, ops


def g_chain(B, H, m, c, dst, acc=None, transposed=None, tag=""):
    if transposed is None:
        transposed = m != "v"
    if acc is None:
        acc = B.val(f"acc{tag}", 4)
    ms = []
    for k in range(6):
        a, b = (W[m][c][k], H[k]) if transposed else (H[k], W[m][c][k])
        ms.append(B.mfma("m32", acc, a, b, acc if k else None, tag=f"G{tag}.{k}"))
    if dst is not None:
        pack(B, dst, acc, tag)
    return ms


def pack(B, dst, acc, tag=""):
    dst = R(dst)
    acc = R(acc)
    r = []
    for h in range(2):
        r.append(B.valu(CVT, Ref(dst.val, dst.off + h, 1), Ref(acc.val, acc.off + 2 * h, 1), Ref(acc.val, acc.off + 2 * h + 1, 1), tag="cvt" + tag))
        r[-1].drain = not acc.val.persistent
    return r


def s_mfma(B, K, Q, left, tag):
    acc = B.val("S" + tag, 4)
    m16 = B.mfma("m16", acc, K[4:6], Q[4:6], vCm.all().wide(4) if left else None, tag="S16." + tag)
    m32 = B.mfma("m32", acc, K[0:4], Q[0:4], acc, tag="S32." + tag)
    return acc, m16, m32


def s_tile(B, K, Q, dst, left=False, tag=""):
    acc, m16, m32 = s_mfma(B, K, Q, left, tag)
    if left:
        B.valu("v_exp_f32 {0}, {1}", acc[0], acc[0], kind="trans", tag="exp" + tag).drain = True
        B.valu(CVT, dst, acc[0], "0", tag="cvtP" + tag).drain = True
    else:
        for r in range(4):
            B.valu("v_exp_f32 {0}, {1}", acc[r], acc[r], kind="trans", tag="exp" + tag).drain = True
        pack(B, dst, acc, "P" + tag)
    return m16, m32


def s_batch(pairs):
    return [p[0] for p in pairs] + [p[1] for p in pairs]


def pv_tile(B, j, P1, P2, V1, V2, guard=True):
    l = B.val(f"l{j}", 4)
    O = [B.val(f"O{j}{c}", 4) for c in range(3)]
    p2 = P2.all().wide(4)
    ms = [B.mfma("m32", l, ONES, P1, tag=f"RS{j}"), B.mfma("m32", l, ONES, p2, l, tag=f"RS{j}")]
    for c in range(3):
        ms += [B.mfma("m32", O[c], V1[c], P1, tag=f"PV{j}{c}"), B.mfma("m32", O[c], V2[c].all().wide(4), p2, O[c], tag=f"PV{j}{c}")]
    ri = B.val(f"ri{j}")
    B.valu("v_mul_f32 {0}, {1}, {2}", l[0], f32(ALPHA), l[0], tag="lmul")
    B.valu("v_rcp_f32 {0}, {1}", ri, l[0], kind="trans", tag="rcp")
    if guard:
        B.valu("v_max3_f32 {0}, {0}, {1}, {2}", vGuard, l[0], ri, rmw=True, tag="guard")
    o4, o2 = B.val(f"o4{j}", 4), B.val(f"o2{j}", 2)
    for c in range(3):
        for r in range(4):
            B.valu("v_mul_f32 {0}, {1}, {2}", O[c][r], O[c][r], ri, tag="onorm")
        pack(B, o4[2 * c:2 * c + 2] if c < 2 else o2, O[c], f"O{j}")
    wr = [B.dsw("ds_write_b128", vWr4, o4, L_O + j * 6144, tag=f"wO{j}"), B.dsw("ds_write_b64", vWr2, o2, L_O + j * 6144, tag=f"wO{j}")]
    return ms, wr


def pv_left(B, P1, P2, V1, V2, guard=True):
    l = B.val("lL", 4)
    O = [B.val(f"OL{c}", 4) for c in range(3)]
    p2 = P2.all().wide(4)
    ms = [B.mfma("m32", l, P1, ONES, tag="RSL"), B.mfma("m32", l, p2, ONES, l, tag="RSL")]
    for c in range(3):
        ms += [B.mfma("m32", O[c], P1, V1[c], tag=f"PVL{c}"), B.mfma("m32", O[c], p2, V2[c].all().wide(4), O[c], tag=f"PVL{c}")]
    ri = B.val("riL")
    B.valu("v_mul_f32 {0}, {1}, {2}", l[0], f32(ALPHA), l[0], tag="lmul")
    B.valu("v_rcp_f32 {0}, {1}", ri, l[0], kind="trans", tag="rcp")
    if guard:
        B.valu("v_max3_f32 {0}, {0}, {1}, {2}", vGuard, l[0], ri, rmw=True, tag="guard")
    t = B.val("oL")
    B.valu("v_cndmask_b32 {0}, {1}, {2}, " + MG0, t, O[1][0], O[0][0], tag="selL")
    B.valu("v_cndmask_b32 {0}, {1}, {2}, " + MG1, t, O[2][0], t, tag="selL")
    B.valu("v_mul_f32 {0}, {1}, {2}", t, t, ri, tag="onormL")
    B.valu(CVT, t, t, t, tag="cvtL")
    wr = B.dsw("ds_write_b16", vTv, t, 384, tag="wOL")
    return ms, wr


def conv_mfmas(B, Xd, c, b1, b2, bd, tag):
    m0 = B.mfma("m16", Xd, CWD[c], bd, tag="C16." + tag)
    m1 = B.mfma("sm", Xd, CW1[c], b1, idx=vIdx, tag="Cs1." + tag)
    m2 = B.mfma("sm", Xd, CW2[c], b2, idx=vIdx, tag="Cs2." + tag)
    return m0, m1, m2


def conv_tile(B, Xj, j, window=int(XOPT.get('wc', 4)), addr=None, row=864):
    aH, aV, aD, base = addr or (cH[j], cV[j], cD[j], 0)
    k16, sms, rds = [], [], []
    for c in range(3):
        bd, b1, b2 = B.val(f"bd{j}{c}", 2), B.val(f"b1{j}{c}", 8), B.val(f"b2{j}{c}", 8)
        o = base + 32 * c
        rds.append(B.dsr("ds_read_b64", bd, aD, o, occ=16, window=window, tag="xr"))
        rds.append(B.dsr("ds_read_b128", b1[0:4], aH, o, window=window, tag="xr"))
        rds.append(B.dsr("ds_read_b128", b1[4:8], aH, o + row, window=window, tag="xr"))
        rds.append(B.dsr("ds_read_b128", b2[0:4], aH, o + 2 * row, window=window, tag="xr"))
        rds.append(B.dsr("ds_read_b128", b2[4:8], aV, o, window=window, tag="xr"))
        m0, m1, m2 = conv_mfmas(B, Xj[c], c, b1, b2, bd, f"{j}{c}")
        k16.append(m0)
        sms.append([m1, m2])
    return k16, sms, rds


def ln1(B, tiles, sb=L_S):
    e = []
    for j, Xj in enumerate(tiles):
        a, b = B.val(f"sa{j}"), B.val(f"sb{j}")
        xs = [Xj[c][r] for c in range(3) for r in range(4)]
        B.valu("v_add_f32 {0}, {1}, {2}", a, xs[0], xs[1], tag="st")
        B.valu("v_mul_f32 {0}, {1}, {2}", b, xs[0], xs[0], tag="st")
        B.valu("v_fmac_f32 {0}, {1}, {2}", b, xs[1], xs[1], rmw=True, tag="st")
        for x in xs[2:]:
            B.valu("v_add_f32 {0}, {1}, {2}", a, a, x, tag="st")
            B.valu("v_fmac_f32 {0}, {1}, {2}", b, x, x, rmw=True, tag="st")
        B.swap(32, a, b, tag="st")
        B.valu("v_add_f32 {0}, {1}, {2}", a, a, b, tag="st")
        e.append(a)
    wr = []
    B.swap(16, e[0], e[1], tag="st")
    B.valu("v_add_f32 {0}, {1}, {2}", e[0], e[0], e[1], tag="st")
    wr.append(B.dsw("ds_write_b32", vSw, e[0], sb, tag="wS"))
    if len(tiles) > 2:
        t = B.val("se2")
        B.valu("v_mov_b32 {0}, {1}", t, e[2], tag="st")
        B.swap(16, e[2], t, tag="st")
        B.valu("v_add_f32 {0}, {1}, {2}", e[2], e[2], t, tag="st")
        wr.append(B.dsw("ds_write_b32", vSw, e[2], sb + 512, tag="wS"))
    return wr


def ln2_head(B, sb=L_S):
    a, b = B.val("ra", 4), B.val("rb", 4)
    rd = [B.dsr("ds_read_b128", a, vRd, sb, window=None, tag="rS"), B.dsr("ds_read_b128", b, vRd, sb + 1024, window=None, tag="rS")]
    for v in (a, b):
        B.valu("v_add_f32 {0}, {1}, {2}", v[0], v[0], v[1], tag="ln")
        B.valu("v_add_f32 {0}, {1}, {2}", v[2], v[2], v[3], tag="ln")
        B.valu("v_add_f32 {0}, {1}, {2}", v[0], v[0], v[2], tag="ln")
    E = 192 * 1e-5
    B.valu("v_mul_f32 {0}, {1}, {2}", a[1], f32(1.0 / 192), a[0], tag="ln")
    B.valu("v_fma_f32 {0}, -{1}, {2}, {3}", b[0], a[1], a[0], b[0], tag="ln")
    B.valu("v_max_f32 {0}, 0, {1}", b[0], b[0], tag="ln")
    B.valu("v_add_f32 {0}, {1}, {2}", b[0], f32(E), b[0], tag="ln")
    B.valu("v_rsq_f32 {0}, {1}", b[0], b[0], kind="trans", tag="ln")
    B.valu("v_mul_f32 {0}, {1}, {2}", b[0], f32(ALPHA * math.sqrt(192.0)), b[0], tag="ln")
    B.valu("v_mul_f32 {0}, -{1}, {2}", b[1], a[1], b[0], tag="ln")
    wr = B.dsw("ds_write_b64", vBw, b[0:2], sb, tag="wB")
    return rd, wr


BC_OFF = [768, 768 + 128, 1792]


def ln2_tile(B, Xj, j, slot, sb=L_S):
    rn = B.val(f"rn{j}", 2)
    rd = B.dsr("ds_read_b64", rn, vBr, sb + BC_OFF[j], window=None, tag="rB")
    h4, h2 = B.val(f"h4{j}", 4), B.val(f"h2{j}", 2)
    for c in range(3):
        for h in range(2):
            d = h4[2 * c + h] if c < 2 else h2[h]
            t = B.val("ht")
            B.valu("v_fma_f32 {0}, {1}, {2}, {3}", d, Xj[c][2 * h], rn[0], rn[1], tag="nrm")
            B.valu("v_fma_f32 {0}, {1}, {2}, {3}", t, Xj[c][2 * h + 1], rn[0], rn[1], tag="nrm")
            B.valu(CVT, d, d, t, tag="cvth").bonus = 24
    wr = [B.dsw("ds_write_b128", vWr4, h4, L_H + slot * 6144, tag=f"wh{slot}"), B.dsw("ds_write_b64", vWr2, h2, L_H + slot * 6144, tag=f"wh{slot}")]
    return rd, wr


def wo_frag(B, c, k, window):
    if wo_slot(c, k) < 0:
        return WOR[3 * k + c]
    v = B.val(f"wo{c}{k}", 4)
    B.wo_reads.append(B.dsr("ds_read_b128", v, vWo, wo_slot(c, k) * 1024, window=window, tag=f"rWo{c}{k}"))
    return v


def proj(B, tiles, window=int(XOPT.get('wp', 6))):
    steps, rds = [], []
    for k in range(6):
        wo = [wo_frag(B, c, k, window) for c in range(3)]
        st = []
        for j, (Xj, ld) in enumerate(tiles):
            o, r = ld(k)
            rds += r
            for c in range(3):
                st.append(B.mfma("m32", Xj[c], wo[c], o, Xj[c], tag=f"P{k}.{j}{c}"))
        steps.append(st)
    return steps, rds


def proj_tile(B, wo, Xj, ld, tag):
    fr, rds = [], []
    for k in range(6):
        o, r = ld(k)
        fr.append(o)
        rds += r
    return [[B.mfma("m32", Xj[c], wo[c][k], fr[k], Xj[c], tag=f"P{tag}{c}.{k}") for k in range(6)] for c in range(3)], rds


def o_loader(B, j, window=int(XOPT.get('wp', 6))):
    def ld(k):
        v = B.val(f"of{j}{k}", 4)
        return v, [B.dsr("ds_read_b128", v, vRd, L_O + j * 6144 + k * 1024, window=window, tag=f"rO{j}{k}")]
    return ld


def store_pair(B, xa, xb, addr, soff, occ=264):
    pk = B.val("opk", 4)
    pack(B, pk[0:2], xa, "out")
    pack(B, pk[2:4], xb, "out")
    B.swap(16, pk[0], pk[2], tag="oswap")
    B.swap(16, pk[1], pk[3], tag="oswap")
    return B.vms("buffer_store_dwordx4", pk, addr, sOUT, soff, 0, extra=STF, tag="store", occ=occ)


def out_store(B, Xs, soff):
    sts = [store_pair(B, Xs[0][0], Xs[0][1], vSt[0], soff), store_pair(B, Xs[1][0], Xs[1][1], vSt[1], soff),
           store_pair(B, Xs[0][2], Xs[1][2], vStM, soff), store_pair(B, Xs[2][0], Xs[2][1], vSt[2], soff)]
    pk = B.val("opk", 2)
    pack(B, pk, Xs[2][2], "out")
    sts.append(B.vms("buffer_store_dwordx2", pk, vStX, sOUT, soff, 0, extra=STF, tag="store"))
    return sts


MAGIC, MSH = 7183, 22
assert all((q * MAGIC) >> MSH == q // 584 for q in range(6200))


def win_calc():
    L = ["s_lshl_b32 s60, s31, 5", "s_add_u32 s61, s60, s30", "s_add_u32 s60, s60, s29",
         f"s_mul_i32 s62, s60, {MAGIC}", f"s_lshr_b32 s62, s62, {MSH}", "s_mul_i32 s63, s62, 584", "s_sub_u32 s63, s60, s63",
         "s_lshr_b32 s64, s63, 3", "s_and_b32 s65, s63, 7", "s_lshl_b32 s66, s62, 3", "s_add_u32 s65, s65, s66",
         "s_cmp_ge_u32 s60, 5256", "s_cselect_b32 s64, s63, s64", "s_cselect_b32 s65, 72, s65",
         f"s_mul_i32 s66, s65, {7 * ROWB}", "s_mul_i32 s67, s64, 2688", "s_add_u32 s35, s66, s67",
         f"s_cmp_ge_u32 s61, {PERX}", f"s_cselect_b32 s35, {OOB}, s35",
         "s_cmp_ge_u32 s60, 5329", f"s_cselect_b32 s35, {OOB}, s35",
         "s_cmp_eq_u32 s65, 0", f"s_cselect_b32 s36, {OOB}, s35"]
    for r in range(1, 9):
        rr = r if r < 5 else r - 5
        L.append(f"s_add_u32 s{36 + r}, s35, {r * ROWB - 864 * rr}")
    L += ["s_cmp_eq_u32 s64, 0", "s_cselect_b64 s[52:53], s[48:49], 0", "s_cmp_eq_u32 s64, 72", "s_cselect_b64 s[52:53], s[50:51], s[52:53]",
          "s_add_u32 s31, s31, 1"]
    return L


def x_dma(B, lat=300):
    a = B.val("dmaaddr")
    cm = B.valu("v_cndmask_b32 {0}, {1}, 2.0, s[52:53]", a, vDma, tag="dmaaddr")
    dm = []
    m0 = m0first = B.salu("s_mov_b32 m0, s58", tag="m0")
    for r in range(9):
        if r == 5:
            m0 = B.salu("s_mov_b32 m0, s59", tag="m0")
            B.dep(dm[-1], m0, 4)
        d = B.dma(a, sX, f"s{36 + r}", 864 * (r if r < 5 else r - 5), extra=NT, tag=f"dma{r}")
        d.lat = lat
        B.dep(m0, d, 8)
        if dm:
            B.dep(dm[-1], d, int(XOPT.get("dsp", 112)))
        dm.append(d)
    return cm, m0first, dm


def x_prefetch(B, after):
    calc = [B.salu(x, tag="win") for x in win_calc() +
            [f"s_sub_u32 s68, s35, {SHIFT}", "s_cselect_b32 s68, s35, s68"]]
    for x in after:
        B.dep(x, calc[0], 4)
    pf = B.add(Op("vml", f"buffer_load_dword {{0}}, {{1}}, {sDW}, s68 offen", [vSink, vPf], [], [vPf], slots=2, occ=256, tag="prefetch"))
    B.dep(calc[-1], pf, 4)
    return calc, pf


def rotate(B, after):
    ops = [B.salu("s_mov_b32 s32, s33"), B.salu("s_mov_b32 s33, s34"), B.salu("s_mov_b32 s34, s35")]
    for x in after:
        B.dep(x, ops[0], 4)
    return ops


def weave(*streams):
    items = []
    for si, s in enumerate(streams):
        n = len(s)
        for i, ch in enumerate(s):
            items.append(((i + 0.5) / n, si, ch))
    items.sort(key=lambda x: (x[0], x[1]))
    return [o for _, _, ch in items for o in ch]


def flat(l):
    r = []
    for x in l:
        if isinstance(x, (list, tuple)):
            r += flat(x)
        else:
            r.append(x)
    return r


def new_block(name):
    B = Block(name)
    B.wo_reads = []
    return B


def ws_slot(i):
    return ["s75", "s77", "s78"][i // 4], 1024 * (i % 4)


def table_reads(B, V2):
    KL, QL = V6(B, "KL"), V6(B, "QL")
    trd = [B.dsr("ds_read2_b64", QL[0:4], vTk, " offset0:96 offset1:97", occ=32, tag="rQL"), B.dsr("ds_read_b64", QL[4:6], vTk, 768 + 16, tag="rQL"),
           B.dsr("ds_read2_b64", KL[0:4], vTk, " offset0:0 offset1:1", occ=32, tag="rKL"), B.dsr("ds_read_b64", KL[4:6], vTk, 16, tag="rKL")]
    for c in range(3):
        trd.append(B.dsr("ds_read_u16", V2[c][2], vTv, 32 * c, tag="rVL"))
    B.valu(f"v_add_u32 {{0}}, {TS}, {{0}}", vTk, rmw=True, tag="tk")
    return KL, QL, trd


def body(B, p, mode="mid", inc=None):
    has_p, has_next = mode != "first", mode != "last"
    Xc, Xo = X[p], X[1 - p]
    if inc is None:
        H0 = [B.val(f"H0in{k}", 4, pin=H0_PIN[k], live_in=True) for k in range(6)]
        Q0, K0 = V6(B, "Q0", pin=Q0_PIN, live_in=True), V6(B, "K0", pin=K0_PIN, live_in=True)
        accx = B.val("accx", 4, pin=ACC_PIN, live_in=True, ready=24)
        pack(B, K0[4:6], accx, "K0")
    else:
        H0, Q0, K0 = inc["H0"], inc["Q0"], inc["K0"]
    Q = [Q0, V6(B, "Q1"), V6(B, "Q2")]
    K = [K0, V6(B, "K1"), V6(B, "K2")]
    V1 = [B.val(f"V1{c}", 4) for c in range(3)]
    V2 = [B.val(f"V2{c}", 3, pin=V2_PIN[c]) for c in range(3)]
    KL, QL, trd = table_reads(B, V2)
    gv0 = [g_chain(B, H0, "v", c, V1[c][0:2], tag=f"v0{c}") for c in range(3)]
    bs = B.bar("Bs")
    hwr = []
    if inc is None:
        b1 = B.bar("B1")
        for j in (1, 2):
            rd, wr = ln2_tile(B, Xc[j], j, j)
            B.before_bar([rd] + wr, b1)
            hwr += wr
    else:
        b1 = inc["bd"]
        for w_ in inc["twr"]:
            B.after(w_, trd)
        B.before_bar(inc["twr"], bs)
        B.after(bs, trd[4:])
    stores = []
    if has_p:
        psteps, ords = proj(B, [(Xo[j], o_loader(B, j)) for j in range(3)])
        B.before_bar(ords, bs)
        stores = out_store(B, Xo, "s32")
        for i, x in enumerate(stores):
            x.due = (psteps[5][-1], 264 * i)
    H1, r1 = g_load(B, 1)
    H2, r2 = g_load(B, 2)
    B.after(b1, r1 + r2)
    g1 = {m: [g_chain(B, H1, m, c, {"q": Q[1][2 * c:2 * c + 2], "k": K[1][2 * c:2 * c + 2], "v": V1[c][2:4]}[m], tag=f"{m}1{c}") for c in range(3)] for m in "qkv"}
    g2 = {m: [g_chain(B, H2, m, c, {"q": Q[2][2 * c:2 * c + 2], "k": K[2][2 * c:2 * c + 2], "v": V2[c][0:2]}[m], tag=f"{m}2{c}") for c in range(3)] for m in "qkv"}
    bh = B.bar("Bh") if has_next else None
    bo = B.bar("Bo")
    B.before_bar(r1 + r2, bo)
    if has_next:
        if inc is None:
            cm, m0, dm = x_dma(B)
            for w_ in hwr[:int(XOPT.get("dafter", 0))]:
                B.dep(w_, dm[0], 4)
            B.after(dm[-1], stores)
            xlast = dm[-1]
        else:
            xlast = inc["xdma"]
        cv = [conv_tile(B, Xo[j], j) for j in range(3)]
        xr = flat([c[2] for c in cv])
        B.after(xlast, xr, 0, "vm")
        calc, pf = x_prefetch(B, [inc["vmlast"] if inc else xlast])
        pf.bonus = 3000
        for x in stores:
            B.dep(x, pf, 4)
        swr = ln1(B, Xo)
        B.after(b1, swr)
        B.before_bar(swr, bs)
        srd, bwr = ln2_head(B)
        B.after(bs, srd)
        B.before_bar(srd, bh)
        rd, wr = ln2_tile(B, Xo[0], 0, 0)
        B.dep(bwr, rd, 4)
        B.before_bar(wr, bh)
        rotate(B, stores)
    P1 = [B.val(f"P1{j}", 4) for j in range(4)]
    order2 = [0, 1, 3, 2]
    P2 = {j: B.val(f"P2{j}", 3, pin=P2_PIN[i % 2]) for i, j in enumerate(order2)}
    Qs = Q + [QL]
    S = {}
    for j in order2:
        for i in range(2):
            S[i, j] = s_tile(B, K[i], Qs[j], P1[j][2 * i:2 * i + 2], tag=f"{i}{j}")
    pv = {}
    for n_, j in enumerate(order2):
        n0 = len(B.ops)
        S[2, j] = s_tile(B, K[2], Qs[j], P2[j][0:2], tag=f"2{j}")
        S[3, j] = s_tile(B, KL, Qs[j], P2[j][2], left=True, tag=f"3{j}")
        if n_ >= 2:
            for o in B.ops[n0:]:
                if any(d.val is P2[j] for d in o.defs):
                    for m in pv[order2[n_ - 2]]:
                        B.dep(m, o, 4)
        if j == 3:
            pv[j], w = pv_left(B, P1[j], P2[j], V1, V2)
            B.valu(f"v_add_u32 {{0}}, {TS}, {{0}}", vTv, rmw=True, tag="tv")
            B.before_bar([w], bo)
        else:
            pv[j], w = pv_tile(B, j, P1[j], P2[j], V1, V2)
            B.after(bs, w)
            B.before_bar(w, bo)
    if inc is not None:
        B.before_bar(inc["ostage"], bs)
        for o in inc["late"]:
            B.dep(pv[1][-1], o, 4)
            o.bonus = 2000
    if has_next:
        Hn, rn = g_load(B, 0, pins=H0_PIN, live_out=True)
        B.after(bh, rn)
        B.before_bar(rn, bo)
        Qn = V6(B, "Q0n", pin=Q0_PIN, live_out=True)
        Kn = V6(B, "K0n", pin=K0_PIN, live_out=True)
        accn = B.val("accn", 4, pin=ACC_PIN, live_out=True)
        n0 = len(B.ops)
        gq = [g_chain(B, Hn, "q", c, Qn[2 * c:2 * c + 2], tag=f"qn{c}") for c in range(3)]
        gk = [g_chain(B, Hn, "k", c, Kn[2 * c:2 * c + 2], tag=f"kn{c}") for c in range(2)]
        gk.append(g_chain(B, Hn, "k", 2, None, acc=accn, tag="kn2"))
        if inc is None:
            for k in range(6):
                B.dep(gv0[2][k], rn[k], 4)
            for o in B.ops[n0:]:
                for d in o.defs:
                    if Qn.has(d.val):
                        for i in range(4):
                            B.dep(S[i, 0][1], o, 4)
                    if Kn.has(d.val):
                        for j in range(4):
                            B.dep(S[0, j][1], o, 4)
    else:
        tail = post_ops(B, bo)
    bb = []
    g1l = g1["k"] + g1["q"] + g1["v"]
    cvw = lambda j, g: g[0] + cv[j][0] + cv[j][1][0] + g[1][:3] + cv[j][1][1] + g[1][3:] + cv[j][1][2]
    if mode == "first":
        bb += flat(gv0) + flat(g1l[:6]) + s_batch([S[0, 0], S[1, 0]]) + cvw(0, g1l[6:8]) + g1l[8]
        bb += s_batch([S[0, 1], S[1, 1]]) + cvw(1, g2["k"][:2]) + g2["k"][2] + s_batch([S[0, 3], S[1, 3]]) + cvw(2, g2["v"][:2])
        bb += s_batch([S[2, 0], S[3, 0]]) + g2["v"][2] + s_batch([S[2, 1], S[3, 1]]) + g2["q"][0] + [bs]
        bb += g2["q"][1] + pv[0] + s_batch([S[2, 3], S[3, 3]]) + pv[1] + g2["q"][2] + pv[3]
        bb += s_batch([S[0, 2], S[1, 2], S[2, 2], S[3, 2]]) + [bh] + gq[0] + gq[1] + pv[2] + gq[2] + gk[0] + gk[1] + gk[2] + [bo]
        return bb
    bb += gv0[0] + psteps[0] + gv0[1] + psteps[1] + gv0[2] + psteps[2]
    bb += s_batch([S[0, 0], S[0, 3]]) + psteps[3] + psteps[4] + [b1] + psteps[5]
    if has_next:
        for j in range(3):
            bb += cvw(j, g1l[3 * j:3 * j + 2]) + g1l[3 * j + 2]
    else:
        bb += flat(g1l)
    bb += s_batch([S[1, 0], S[0, 1]]) + g2["k"][0] + g2["k"][1] + [bs] + g2["k"][2]
    bb += s_batch([S[1, 1], S[1, 3]]) + g2["v"][0] + g2["v"][1] + s_batch([S[2, 0], S[3, 0]]) + g2["v"][2]
    bb += s_batch([S[2, 1], S[3, 1]]) + g2["q"][0] + pv[0] + g2["q"][1] + s_batch([S[2, 3], S[3, 3]]) + pv[1] + g2["q"][2]
    if has_next:
        bb += [bh] + pv[3] + s_batch([S[0, 2], S[1, 2], S[2, 2], S[3, 2]]) + gq[0] + gq[1] + gq[2] + pv[2] + gk[0] + gk[1] + gk[2] + [bo]
    else:
        pl0, rest = tail
        bb += pv[3] + s_batch([S[0, 2], S[1, 2], S[2, 2], S[3, 2]]) + pl0[0] + pl0[1] + pv[2] + pl0[2] + [bo] + rest
    return bb


def left_loader(B, addr):
    def ld(k):
        o0, o1 = (12 * k, 12 * k + 4) if k < 4 else (24 * (k - 4) + 8, 24 * (k - 4) + 20)
        v = B.val("ofl", 4)
        return v, [B.dsr("ds_read2_b64", v, addr, f" offset0:{o0} offset1:{o1}", occ=32)]
    return ld


def left_proj(B, wo):
    la = B.val("la", 4)
    B.vml("buffer_load_dwordx4", la, vRd, sWS, *ws_slot(6), tag="unstash")
    for a in range(2):
        for c in range(3):
            B.vml("buffer_load_dwordx4", X[1][a][c], vRd, sWS, *ws_slot(3 * a + c), tag="unstash")
    rd1 = B.val("rd1")
    B.valu(f"v_add_u32 {{0}}, {16 * TS}, {{1}}", rd1, la[3])
    pl0, r0 = proj_tile(B, wo, X[1][0], left_loader(B, la[3]), "L0")
    pl1, r1 = proj_tile(B, wo, X[1][1], left_loader(B, rd1), "L1")
    store_pair(B, X[1][0][0], X[1][0][1], la[0], "0")
    store_pair(B, X[1][0][2], X[1][1][2], la[2], "0", occ=200)
    store_pair(B, X[1][1][0], X[1][1][1], la[1], "0", occ=120)
    return pl0, r0, pl1, r1


def post_ops(B, bo):
    wo = [[wo_frag(B, c, k, 12) for k in range(6)] for c in range(3)]
    pl0, r0, pl1, r1 = left_proj(B, wo)
    B.after(bo, r1)
    rest = []
    for j in range(3):
        ch, r = proj_tile(B, wo, X[0][j], o_loader(B, j), f"W{j}")
        B.after(bo, r)
        rest.append(ch)
    out_store(B, X[0], "s33")
    gw = B.dsw("ds_write_b32", vSw, vGuard, L_S, tag="wguard")
    B.before_bar([gw], bo)
    ga, gv = B.val("ga"), B.val("gv", 4)
    B.valu("v_and_b32 {0}, -16, {1}", ga, vSw)
    gr = B.dsr("ds_read_b128", gv, ga, L_S, window=None, tag="rguard")
    B.after(bo, [gr])
    B.valu("v_max3_f32 {0}, {1}, {2}, {3}", vGuard, gv[0], gv[1], gv[2])
    B.valu("v_max_f32 {0}, {0}, {1}", vGuard, gv[3], rmw=True)
    return pl0, flat(rest[0] + rest[1] + rest[2] + pl1)


def finish(B, bb, **kw):
    lim = int(XOPT.get("lim", len(POOL["v"]) - 15))
    while True:
        B.schedule(bb, verbose=True, drain=int(XOPT.get('drain', 200)), limit=lim, holes=V2_PIN + P2_PIN, **kw)
        try:
            B.allocate(POOL, tries=40, verbose=2 if 'press' in XOPT else True)
            break
        except RuntimeError as e:
            lim -= 3
            if lim < 90:
                raise
    if XOPT.get("stalls") == B.name:
        print(" ".join(f"{i}:{tag}:{c}" for i, c, tag in B.stalls))
    if XOPT.get("dump") == B.name:
        for o in B.out:
            print(o.t, o.kind, o.tag or o.fmt)
    return B


def lane_table(dst, tmp, vt, vals):
    w = [sum(vals[4 * i + k] << (8 * k) for k in range(4)) for i in range(4)]
    L = [f"v_mov_b32 v{dst}, 0x{w[0]:08x}"]
    for i in range(1, 4):
        L += [f"v_cmp_le_u32 vcc, {4 * i}, v{vt}", f"v_mov_b32 v{tmp}, 0x{w[i]:08x}", f"v_cndmask_b32 v{dst}, v{dst}, v{tmp}, vcc"]
    L += [f"v_and_b32 v{tmp}, 3, v{vt}", f"v_lshlrev_b32 v{tmp}, 3, v{tmp}", f"v_bfe_u32 v{dst}, v{dst}, v{tmp}, 8"]
    return L


VL, VG, VT = 220, 221, 222
T0, T1, T2, T3 = 223, 224, 225, 226


def left_offsets(dst, src, add):
    t0, t1, t2 = T0, T1, T2
    return [f"v_add_u32 v{t0}, {add}, v{src}", f"v_lshlrev_b32 v{t0}, 5, v{t0}",
            f"v_add_u32 v{t1}, s30, v{t0}", f"v_cmp_gt_u32 s[60:61], s72, v{t1}",
            f"v_add_u32 v{t0}, s29, v{t0}", f"v_cmp_gt_u32 s[62:63], s73, v{t0}",
            f"v_mul_u32_u24 v{t1}, {MAGIC}, v{t0}", f"v_lshrrev_b32 v{t1}, {MSH}, v{t1}", "s_and_b64 s[60:61], s[60:61], s[62:63]",
            f"v_mul_u32_u24 v{t2}, 584, v{t1}", f"v_sub_u32 v{t2}, v{t0}, v{t2}",
            f"v_cmp_le_u32 vcc, 5256, v{t0}",
            f"v_and_b32 v{dst}, 7, v{t2}", f"v_lshl_add_u32 v{t1}, v{t1}, 3, v{dst}",
            f"v_mov_b32 v{dst}, 72", f"v_cndmask_b32 v{t1}, v{t1}, v{dst}, vcc",
            f"v_lshrrev_b32 v{dst}, 3, v{t2}", f"v_cndmask_b32 v{t2}, v{dst}, v{t2}, vcc",
            f"v_mul_u32_u24 v{t1}, {7 * ROWB}, v{t1}", f"v_mul_u32_u24 v{t2}, 2688, v{t2}", f"v_add_u32 v{dst}, v{t1}, v{t2}",
            f"v_cndmask_b32 v{dst}, 2.0, v{dst}, s[60:61]"]


PRE_TRW, PRE_TRO = 255, 254
PRE_WOA, PRE_WQ = [251, 252, 253], [243, 244, 245]
PRE_TK, PRE_TV = [249, 250], [247, 248]
PRE_TR, V_LEFT = 246, 242
PRE_LH, PRE_LV, PRE_LD = 239, 240, 241
PRE_DW = [236, 237, 238]
PRE_HSH = 235
PRE_PF = [232, 233, 234]
PRE_LA = 228
V_TAB = 227


def unit_src(i):
    m, u = divmod(i, 6)
    return (sWQ, 32 * u * 1152 + m * 384, PRE_WQ) if m < 3 else (sWO, 32 * u * 384, PRE_WOA)


def setup():
    r = lambda v: f"v{v.pin}"
    L = ["s_cmp_ge_u32 s2, 256", "s_cbranch_scc1 L_exit",
         "s_load_dwordx8 s[36:43], s[0:1], 0", "s_load_dwordx2 s[44:45], s[0:1], 32", "s_load_dwordx2 s[46:47], s[0:1], 48",
         "v_lshrrev_b32 v1, 6, v0", "s_and_b32 s60, s2, 7", "s_lshr_b32 s30, s2, 3", "v_readfirstlane_b32 s28, v1",
         f"v_and_b32 v{VL}, 63, v0", f"s_mul_i32 s29, s60, {PERX}", "s_add_u32 s29, s29, s30", f"s_mov_b32 s72, {PERX}", "s_mov_b32 s73, 5329",
         "s_mul_i32 s74, s28, 96", f"s_mul_i32 s81, s28, {STAGE_W}", f"s_add_u32 s81, s81, {L_STAGE}", "s_lshl_b32 s76, s28, 10"]
    L += left_offsets(V_TAB, VL, 0)
    L += [f"v_mul_u32_u24 v{T0}, 43, v{VL}", f"v_lshrrev_b32 v{T0}, 8, v{T0}", f"v_mul_u32_u24 v{T1}, 6, v{T0}", f"v_sub_u32 v{T1}, v{VL}, v{T1}",
          f"v_lshl_add_u32 v{T1}, v{T1}, 4, s74", f"v_cmp_gt_u32 vcc, 54, v{VL}",
          f"v_mul_u32_u24 v{T2}, 384, v{T0}", f"v_add_u32 v{T1}, v{T1}, v{T2}", f"v_cndmask_b32 {r(vDma)}, 2.0, v{T1}, vcc",
          f"v_mul_u32_u24 v{T0}, 11, v{T0}", f"v_lshrrev_b32 v{T0}, 5, v{T0}", f"v_mul_u32_u24 v{T0}, {ROWB - 3 * 384}, v{T0}",
          f"v_add_u32 v{T1}, {3 * ROWB + 3 * 384}, v{T1}", f"v_add_u32 v{T1}, v{T1}, v{T0}", f"v_cndmask_b32 v{V_LEFT}, 2.0, v{T1}, vcc",
          ]
    assert all((p * 11) >> 5 == p // 3 for p in range(9))
    L += [f"v_readlane_b32 s{60 + n}, v{V_TAB}, {n}" for n in range(3)]
    L += [f"v_lshlrev_b32 v{T0}, 6, v{VL}", f"v_cmp_gt_u32 vcc, 27, v{VL}", "s_lshl_b32 s69, s30, 2", "s_add_u32 s69, s69, s28",
          f"v_cndmask_b32 v{T1}, 2.0, v{T0}, vcc", f"v_cmp_gt_u32 vcc, 9, v{VL}", "s_mul_i32 s70, s69, 1728", "s_mul_i32 s71, s69, 576",
          f"v_cndmask_b32 v{T2}, 2.0, v{T0}, vcc"]
    left = lambda n, sr: [f"s_add_u32 m0, s81, {9216 + 864 * n}", "s_nop 0", f"buffer_load_dwordx4 v{V_LEFT}, {sX}, s{sr} offen{NT} lds"]
    L += ["s_waitcnt lgkmcnt(0)",
          "s_mov_b32 s16, s40", "s_mov_b32 s17, s41", "s_mov_b32 s18, 221184", "s_mov_b32 s19, 0x20000",
          f"buffer_load_dword v{PRE_PF[0]}, v{T1}, {sWQ}, s70 offen",
          "s_mov_b32 s24, s38", "s_mov_b32 s25, s39", "s_mov_b32 s26, 3456", "s_mov_b32 s27, 0x20000", f"s_add_u32 m0, s76, {L_H + 6144}",
          f"s_sub_u32 s4, s36, {SHIFT}", "s_subb_u32 s5, s37, 0", f"s_mov_b32 s6, {XBYTES + SHIFT}", "s_mov_b32 s7, 0x20000",
          f"buffer_load_dwordx4 {r(vDma)}, {sDW}, 0 offen lds"]
    for n in range(3):
        L += left(n, 60 + n)
    L += ["s_mov_b32 s20, s42", "s_mov_b32 s21, s43", "s_mov_b32 s22, 73728", "s_mov_b32 s23, 0x20000",
          f"buffer_load_dword v{PRE_PF[1]}, v{T2}, {sWO}, s71 offen"]
    if "nocpf" not in XOPT:
        L += ["s_getpc_b64 s[62:63]", "L_pc:", "s_mul_i32 s69, s69, 320", "s_min_u32 s69, s69, L_exit-L_pc-320", "s_add_u32 s62, s62, s69", "s_addc_u32 s63, s63, 0",
              f"v_min_u32 v{T1}, 4, v{VL}", f"v_lshlrev_b32 v{T1}, 6, v{T1}", f"global_load_dword v{PRE_PF[2]}, v{T1}, s[62:63]"]
    L += [f"v_readlane_b32 s{60 + n}, v{V_TAB}, {n}" for n in range(3, 9)]
    L += ["s_mov_b32 s8, s44", "s_mov_b32 s9, s45", f"s_mov_b32 s10, {XBYTES}", "s_mov_b32 s11, 0x20000",
          "s_mov_b32 s12, s46", "s_mov_b32 s13, s47", f"s_mov_b32 s14, {256 * WS_PER_WG}", "s_mov_b32 s15, 0x20000",
          "s_mov_b32 s24, s36", "s_mov_b32 s25, s37", f"s_mov_b32 s26, {XBYTES}"]
    for n in range(3, 9):
        L += left(n, 60 + n)
    L += [f"v_readlane_b32 s{36 + n - 9}, v{V_TAB}, {n}" for n in range(9, NWIN)]
    for i in range(3):
        L += [f"v_add_u32 v{T0}, {64 * i}, v{VL}", f"v_mul_u32_u24 v{T1}, 171, v{T0}", f"v_lshrrev_b32 v{T1}, 10, v{T1}",
              f"v_mul_u32_u24 v{T2}, 6, v{T1}", f"v_sub_u32 v{T2}, v{T0}, v{T2}", f"v_lshl_add_u32 v{T2}, v{T2}, 4, s74",
              f"v_subrev_u32 v{T2}, {1024 * i}, v{T2}",
              f"v_mul_u32_u24 v{T0}, 1152, v{T1}", f"v_add_u32 v{PRE_WQ[i]}, v{T0}, v{T2}",
              f"v_mul_u32_u24 v{T0}, 384, v{T1}", f"v_add_u32 v{PRE_WOA[i]}, v{T0}, v{T2}"]
    assert all((q * 171) >> 10 == q // 6 for q in range(192))
    L += ["s_mov_b64 s[48:49], 0x3f", "s_mov_b32 s50, 0", "s_mov_b32 s51, 0x3f0000",
          "s_mov_b32 s54, 0xffff", "s_mov_b32 s55, 0", "s_mov_b32 s56, -1", "s_mov_b32 s57, 0",
          "s_mul_i32 s58, s28, 7936", f"s_add_u32 s58, s58, {L_X}", "s_add_u32 s59, s58, 4320",
          f"s_mul_i32 s75, s2, {WS_PER_WG}", "s_mul_i32 s77, s28, 12288", "s_add_u32 s75, s75, s77", "s_add_u32 s77, s75, 4096", "s_add_u32 s78, s75, 8192",
          "s_mov_b32 s31, 0", "s_mov_b32 s79, 0x4310", "s_mov_b32 s80, 0x5276"]
    return L


def table_addr():
    r = lambda v: f"v{v.pin}"
    return [f"s_add_u32 s60, s74, {L_T}", f"v_mul_u32_u24 v{T0}, 24, v{VG}", f"v_add_u32 {r(vTk)}, s60, v{T0}",
            f"v_min_u32 v{T0}, 2, v{VG}", f"v_lshl_add_u32 v{T0}, v{T0}, 4, v{VT}", "s_add_u32 s60, s60, 384", f"v_lshl_add_u32 {r(vTv)}, v{T0}, 1, s60",
            f"v_cmp_gt_u32 vcc, {NWIN - 16}, v{VT}", f"v_mul_u32_u24 v{T0}, {TS}, v{VT}", f"v_add_u32 v{PRE_TK[0]}, {r(vTk)}, v{T0}",
            f"v_lshl_add_u32 v{T0}, v{VG}, 3, v{T0}", f"v_add_u32 v{PRE_TV[0]}, s60, v{T0}",
            f"v_mov_b32 v{T1}, 0x30000",
            f"v_add_u32 v{T2}, {16 * TS}, v{PRE_TK[0]}", f"v_cndmask_b32 v{PRE_TK[1]}, v{T1}, v{T2}, vcc",
            f"v_add_u32 v{T2}, {16 * TS}, v{PRE_TV[0]}", f"v_cndmask_b32 v{PRE_TV[1]}, v{T1}, v{T2}, vcc"]


def consts():
    r = lambda v: f"v{v.pin}"
    t0, t1, t2, t3 = T0, T1, T2, T3
    GH = 219
    L = [f"v_lshrrev_b32 v{VG}, 4, v{VL}", f"v_and_b32 v{VT}, 15, v{VL}",
         f"v_and_b32 v{t0}, 3, v{VL}", f"v_mul_u32_u24 {r(vIdx)}, 0x5555, v{t0}", f"v_mov_b32 {r(vGuard)}, 0",
         f"v_mov_b32 v{t0}, 0xf149f2ca", f"v_cndmask_b32 {r(vCm)}, v{t0}, 0, {MG0}",
         f"v_mov_b32 v{ZREGS[0]}, 0", f"v_mov_b32 v{ZREGS[1]}, 0",
         f"v_lshrrev_b32 v{GH}, 1, v{VG}", f"v_and_b32 v{t3}, 1, v{VG}", f"v_cmp_eq_u32 s[94:95], 1, v{t3}", f"v_lshlrev_b32 v{t3}, 4, v{t3}",
         f"v_lshlrev_b32 v218, 4, v{GH}", f"v_lshl_add_u32 v218, v{t3}, 1, v218", "v_add_u32 v218, s74, v218"]
    for j in range(3):
        L += lane_table(t0, t1, VT, [y * 16 + x for (y, x) in TOK[j]])
        L += [f"v_lshrrev_b32 v{t1}, 4, v{t0}", f"v_and_b32 v{t0}, 15, v{t0}",
              f"v_mul_u32_u24 {r(vSt[j])}, {ROWB}, v{t1}", f"v_mul_u32_u24 v{t2}, 384, v{t0}"]
        if j == 2:
            L += [f"v_add3_u32 {r(vStX)}, {r(vSt[j])}, v{t2}, s74", f"v_lshl_add_u32 {r(vStX)}, v{VG}, 3, {r(vStX)}", f"v_add_u32 {r(vStX)}, 64, {r(vStX)}"]
        L += [f"v_add3_u32 {r(vSt[j])}, {r(vSt[j])}, v{t2}, v218",
              f"v_mul_u32_u24 v{t1}, 9, v{t1}", f"v_add_u32 v{t0}, v{t0}, v{t1}", f"v_mul_u32_u24 v{t0}, 96, v{t0}", f"v_add_u32 v{t0}, s58, v{t0}",
              f"v_mul_u32_u24 v{t1}, 96, v{GH}", f"v_add3_u32 {r(cH[j])}, v{t0}, v{t1}, v{t3}",
              f"v_mul_u32_u24 v{t1}, 864, v{GH}", f"v_add3_u32 {r(cV[j])}, v{t0}, v{t1}, v{t3}", f"v_add_u32 {r(cV[j])}, 192, {r(cV[j])}",
              f"v_lshl_add_u32 {r(cD[j])}, v{VG}, 3, v{t0}", f"v_add_u32 {r(cD[j])}, 1920, {r(cD[j])}"]
    L += [f"v_add_u32 v{t0}, 64, {r(vSt[0])}", f"v_add_u32 v{t1}, 32, {r(vSt[1])}", f"v_cndmask_b32 {r(vStM)}, v{t0}, v{t1}, s[94:95]"]
    L += [f"v_lshlrev_b32 {r(vRd)}, 4, v{VL}", f"v_add_u32 {r(vWr4)}, s76, {r(vRd)}",
          "s_lshr_b32 s60, s28, 1", "s_add_u32 s60, s60, 4", "s_lshl_b32 s60, s60, 10", "s_and_b32 s61, s28, 1", "s_lshl_b32 s61, s61, 3", "s_add_u32 s60, s60, s61",
          f"v_add_u32 {r(vWr2)}, s60, {r(vRd)}",
          f"s_mul_i32 s60, s28, {WO_W}", f"s_add_u32 s60, s60, {L_WO}", f"v_add_u32 {r(vWo)}, s60, {r(vRd)}",
          f"v_add_u32 v{t0}, v{t3}, v{VT}", f"v_lshlrev_b32 v{t1}, 10, v{GH}",
          f"v_lshl_add_u32 {r(vSw)}, v{t0}, 4, v{t1}", "s_lshl_b32 s60, s28, 2", f"v_add_u32 {r(vSw)}, s60, {r(vSw)}",
          f"v_lshl_add_u32 {r(vBw)}, v{t0}, 3, v{t1}", f"v_add_u32 {r(vBw)}, 768, {r(vBw)}",
          f"v_lshlrev_b32 {r(vBr)}, 3, v{VT}", f"v_mov_b32 v{t0}, 0x3f803f80"]
    L += [f"v_accvgpr_write_b32 a{ONES.pin + a}, v{t0}" for a in range(4)]
    L += table_addr()
    L += [f"v_mul_u32_u24 v{t0}, 864, v{VT}", "s_add_u32 s60, s81, 9216", f"v_add_u32 v{t0}, s60, v{t0}",
          f"v_mul_u32_u24 v{t1}, 96, v{GH}", f"v_add3_u32 v{PRE_LH}, v{t0}, v{t1}, v{t3}",
          f"v_mul_u32_u24 v{t1}, 288, v{GH}", f"v_add3_u32 v{PRE_LV}, v{t0}, v{t1}, v{t3}", f"v_add_u32 v{PRE_LV}, 192, v{PRE_LV}",
          f"v_lshl_add_u32 v{PRE_LD}, v{VG}, 3, v{t0}", f"v_add_u32 v{PRE_LD}, 768, v{PRE_LD}"]
    L += [f"s_add_u32 s60, s76, {L_H + 6144}", f"v_lshl_add_u32 v{t0}, v{VT}, 1, s60", f"v_lshlrev_b32 v{t1}, 2, v{VG}",
          f"v_lshrrev_b32 v{t2}, v{t1}, s79", f"v_and_b32 v{t2}, 15, v{t2}", f"v_mul_u32_u24 v{t2}, 96, v{t2}", f"v_add_u32 v{PRE_DW[0]}, v{t0}, v{t2}",
          f"v_lshrrev_b32 v{t2}, v{t1}, s80", f"v_and_b32 v{t2}, 15, v{t2}", f"v_mul_u32_u24 v{t2}, 96, v{t2}", f"v_add_u32 v{PRE_DW[1]}, v{t0}, v{t2}",
          f"v_add_u32 v{PRE_DW[2]}, {8 * 96}, v{t0}"]
    L += [f"v_lshrrev_b32 v{t0}, 2, v{VL}", f"v_mul_u32_u24 v{t0}, 96, v{t0}", f"v_and_b32 v{t1}, 3, v{VL}", f"v_lshl_add_u32 v{t0}, v{t1}, 3, v{t0}",
          f"v_add_u32 v{PRE_TR}, s81, v{t0}",
          f"s_mul_i32 s70, s28, {WO_W}", f"s_add_u32 s70, s70, {L_WO}", f"v_add_u32 v{PRE_TRW}, s70, v{t0}",
          "s_mul_i32 s71, s28, 3072", f"s_add_u32 s71, s71, {L_O}", f"v_add_u32 v{PRE_TRO}, s71, v{t0}"]
    L += ["s_mul_i32 s60, s28, 61", f"v_add_u32 v{t0}, s60, v{VL}", f"v_mul_u32_u24 v{t1}, 2428, v{t0}", f"v_lshrrev_b32 v{t1}, 16, v{t1}",
          f"v_mul_u32_u24 v{t1}, {ROWB - 27 * 128}, v{t1}", f"v_lshl_add_u32 v{t1}, v{t0}, 7, v{t1}",
          f"v_cmp_gt_u32 vcc, 61, v{VL}", f"v_cndmask_b32 v{t1}, 2.0, v{t1}, vcc", f"v_cmp_gt_u32 vcc, 243, v{t0}", f"v_cndmask_b32 {r(vPf)}, 2.0, v{t1}, vcc"]
    assert all((i * 2428) >> 16 == i // 27 for i in range(250))
    for a in range(2):
        L += left_offsets(PRE_LA + a, VT, 16 * a)
        L += [f"v_add_u32 v{PRE_LA + a}, {3 * ROWB + 3 * 384}, v{PRE_LA + a}", f"v_add_u32 v{PRE_LA + a}, v218, v{PRE_LA + a}"]
    L += [f"v_add_u32 v{t0}, 64, v{PRE_LA}", f"v_add_u32 v{t1}, 32, v{PRE_LA + 1}", f"v_cndmask_b32 v{PRE_LA + 2}, v{t0}, v{t1}, s[94:95]",
          f"v_mul_u32_u24 v{t0}, {TS}, v{VT}", f"v_lshl_add_u32 v{t0}, v{VG}, 3, v{t0}", f"v_add_u32 v{PRE_LA + 3}, {L_T + 768}, v{t0}"]
    L += [f"v_lshrrev_b32 v{t0}, 2, v{VT}"]
    for r_ in range(4):
        L.append(f"v_cmp_eq_u32 s[{82 + 2 * r_}:{83 + 2 * r_}], {r_}, v{t0}")
    L += [f"v_cmp_eq_u32 s[90:91], 3, v{VG}", f"v_cmp_eq_u32 s[92:93], v{t0}, v{VG}",
          f"v_and_b32 v{t0}, 2, v{VT}", f"v_cmp_eq_u32 s[96:97], 0, v{t0}", f"v_and_b32 v{PRE_HSH}, 1, v{VT}", f"v_lshlrev_b32 v{PRE_HSH}, 4, v{PRE_HSH}"]
    return L


def pre_first():
    B = new_block("first")
    li = lambda n, p, k=1: B.val(n, k, pin=p, live_in=True)
    lH, lV, lD = li("lH", PRE_LH), li("lV", PRE_LV), li("lD", PRE_LD)
    dwa = [li("dwa", p) for p in PRE_DW]
    uad = {p: li("uad", p) for p in PRE_WQ + PRE_WOA}
    tr, hsh, la = li("tr", PRE_TR), li("hsh", PRE_HSH), li("la", PRE_LA, 4)
    tk, tv = [li("tk", p) for p in PRE_TK], [li("tv", p) for p in PRE_TV]
    vleft = li("vleft", V_LEFT)
    pf = [li("pf", p) for p in PRE_PF]
    HB = int(XOPT.get("hb", 330))
    T0_ = int(XOPT.get("t0", 300))
    B.ext_vm(0)
    e_dw = B.ext_vm(0)
    e_left = [B.ext_vm(T0_ + HB * n, 27) for n in range(3)]
    e_pf = B.ext_vm(T0_ + HB * 2)
    if "nocpf" not in XOPT:
        e_pf = B.ext_vm(T0_ + HB * 2)
    for v in pf:
        B.dep(e_pf, B.valu("v_mov_b32 {0}, 0", v), 0, "vm")
    udma = {}
    e_left += [B.ext_vm(T0_ + HB * n, 27) for n in range(3, 9)]
    trw, tro = li("trw", PRE_TRW), li("tro", PRE_TRO)
    stash = lambda v, i, mn="buffer_store_dwordx4": B.vms(mn, v, vRd, sWS, *ws_slot(i), tag="stash", occ=90)
    stash(la, 6)
    dwr = []
    for c in range(3):
        dw = [B.val("dw") for i in range(3)]
        for i in range(3):
            dwr.append(B.dsr("ds_read_u16", dw[i], dwa[i], 32 * c, window=None, tag="dw"))
            B.dep(e_dw, dwr[-1], 0, "vm")
        one = B.val("one")
        B.valu("v_cndmask_b32 {0}, 0, 1.0, s[90:91]", one)
        B.valu("v_or_b32 {0}, {1}, {2}", dw[0], dw[0], one)
        for i, dstv in ((0, CW1[c]), (1, CW2[c])):
            for r_ in range(4):
                t = B.val("cwt")
                B.valu(f"v_cndmask_b32 {{0}}, 0, {{1}}, s[{82 + 2 * r_}:{83 + 2 * r_}]", t, dw[i])
                B.valu("v_accvgpr_write_b32 {0}, {1}", dstv[r_], t)
        B.valu("v_lshlrev_b32 {0}, {1}, {2}", dw[2], hsh, dw[2])
        B.valu("v_cndmask_b32 {0}, 0, {1}, s[92:93]", dw[2], dw[2])
        t = B.val("cwt")
        B.valu("v_cndmask_b32 {0}, 0, {1}, s[96:97]", t, dw[2])
        B.valu("v_accvgpr_write_b32 {0}, {1}", CWD[c][0], t)
        t = B.val("cwt")
        B.valu("v_cndmask_b32 {0}, {1}, 0, s[96:97]", t, dw[2])
        B.valu("v_accvgpr_write_b32 {0}, {1}", CWD[c][1], t)
    XL = X[1]
    cl_ = []
    for a in range(2):
        cl_.append(conv_tile(B, XL[a], a, window=None, addr=(lH, lV, lD, a * 16 * 864), row=288))
        for c in range(3):
            stash(XL[a][c], 3 * a + c)
    ba, bbar, bc, bd, be = B.bar("Ba"), B.bar("Bb"), B.bar("Bc"), B.bar("Bd"), B.bar("Be")
    swr = ln1(B, XL[:2], sb=L_H)
    B.before_bar(swr + dwr, ba)
    srd, bwr = ln2_head(B, sb=L_H)
    B.after(ba, srd)
    B.before_bar(srd, bbar)
    HL = []
    for a in range(2):
        rd, wr = ln2_tile(B, XL[a], a, 1 + a, sb=L_H)
        B.dep(bwr, rd, 4)
        B.before_bar([rd] + wr, bbar)
    host = flat(X[1])
    for a in range(2):
        h_, r_ = g_load(B, 1 + a, host=host)
        B.after(bbar, r_)
        B.before_bar(r_, bc)
        HL.append(h_)
    cv = [conv_tile(B, X[0][j], j) for j in range(3)]
    xr = flat([c[2] for c in cv])
    swr = ln1(B, X[0])
    B.before_bar(swr, bc)
    srd, bwr = ln2_head(B)
    B.after(bc, srd)
    B.before_bar(srd, bd)
    for j in range(3):
        rd, wr = ln2_tile(B, X[0][j], j, j)
        B.dep(bwr, rd, 4)
        B.before_bar([rd] + wr, bd)
    H0, r0 = g_load(B, 0)
    B.after(bd, r0)
    B.before_bar(r0, be)
    WOT = [[WOR[3 * k + c] if wo_slot(c, k) < 0 else B.val(f"wot{c}{k}", 4) for k in range(6)] for c in range(3)]
    urd = {}
    chain = [None]
    BONUS = 100000

    def link(first, last):
        if chain[0] is not None:
            B.dep(chain[0], first, 4)
        chain[0] = last

    def hbm(d, hb=HB):
        d.lat, d.hbm, d.bonus, d.lines = 1300, hb, BONUS, 27
        return d

    def row_left(n):
        s1 = B.salu(f"s_add_u32 m0, s81, {9216 + 864 * n}")
        d = hbm(B.dma(vleft, sX, f"s{36 + n - 9}", extra=NT, tag=f"left{n}"))
        B.dep(s1, d, 8)
        link(s1, d)
        e_left.append(d)

    x0 = {}

    def row_x0(r):
        if r == 0:
            calc = [B.salu(x, tag="win") for x in win_calc() + ["s_mov_b32 s33, s35"]]
            link(calc[0], calc[-1])
            x0["a"] = B.val("x0addr")
            cm = B.valu("v_cndmask_b32 {0}, {1}, 2.0, s[52:53]", x0["a"], vDma, tag="dmaaddr")
            cm.bonus = BONUS
            B.dep(calc[-1], cm, 4)
        s1 = B.salu("s_mov_b32 m0, " + ("s58" if r < 5 else "s59"))
        d = hbm(B.dma(x0["a"], sX, f"s{36 + r}", 864 * (r if r < 5 else r - 5), extra=NT, tag=f"x0row{r}"), int(XOPT.get("hb0", 220)))
        B.dep(s1, d, 8)
        link(s1, d)
        x0["last"] = d

    def unit_issue(i, m0txt, after):
        srd_, so, ar = unit_src(i)
        s1 = B.salu(m0txt)
        s2 = B.salu(f"s_mov_b32 s98, {so}")
        udma[i] = []
        for q in range(3):
            d = B.dma(uad[ar[q]], srd_, "s98", 1024 * q, tag=f"stage{i}")
            d.lat, d.bonus, d.lines = 450, BONUS, 32
            B.dep(s2 if q == 0 else udma[i][-1], d, 4)
            udma[i].append(d)
        for x in after:
            B.dep(x, udma[i][0], 0, "lgkm")
        link(s1, udma[i][-1])

    def unit_read(i, addr, base):
        m, u = divmod(i, 6)
        dst = W["qkv"[m]] if m < 3 else WOT
        urd[i] = []
        for b in range(2):
            wv, cc = divmod(2 * u + b, 3)
            k, off = (wv, 2 * cc) if cc < 2 else (4 + (wv >> 1), 2 * (wv & 1))
            for c in range(3):
                o = B.dsr("ds_read_b64_tr_b16", dst[c][k][off:off + 2], addr, base + b * 1536 + c * 32, window=None, occ=12, tag=f"unstage{i}")
                B.dep(udma[i][-1], o, 0, "vm")
                urd[i].append(o)

    for n in range(9, NWIN):
        row_left(n)
    for r_ in range(9):
        row_x0(r_)
    calc = [B.salu(x, tag="win") for x in win_calc() + ["s_mov_b32 s34, s35"]]
    link(calc[0], calc[-1])
    for i in range(18):
        unit_issue(i, f"s_add_u32 m0, s81, {3072 * (i % 9)}", [] if i < 3 else cl_[0][2] if i < 7 else cl_[1][2] if i < 9 else urd[i - 9])
        unit_read(i, tr, 3072 * (i % 9))
        for o in urd[i]:
            o.bonus = BONUS // 2
        B.before_bar(urd[i], be)
    B.after(e_left[15], cl_[0][2], 0, "vm")
    B.after(e_left[NWIN - 1], cl_[1][2], 0, "vm")
    for o in cl_[0][2] + cl_[1][2]:
        o.bonus = BONUS // 2
    B.after(x0["last"], xr, 0, "vm")
    cm, m0, dm1 = x_dma(B)
    B.dep(calc[-1], cm, 4)
    link(m0, dm1[-1])
    for x in xr:
        B.dep(x, dm1[0], 0, "lgkm")
    for d in dm1:
        hbm(d, int(XOPT.get("hb1", 130)))
    for u in range(6):
        unit_issue(18 + u, "s_mov_b32 m0, s71" if u == 0 else f"s_add_u32 m0, s70, {3072 * (u - 1)}", [])
        unit_read(18 + u, tro if u == 0 else trw, 0 if u == 0 else 3072 * (u - 1))
    B.dep(be, udma[18][0], 4)
    prevw = []
    for ks, us in (((1, 4), (19, 20)), ((2,), (21,)), ((3, 5), (22, 23))):
        rds = flat([urd[u] for u in us])
        for w_ in prevw:
            B.after(w_, rds)
        prevw = []
        for k in ks:
            for c in range(3):
                w_ = B.dsw("ds_write_b128", vWo, WOT[c][k], wo_slot(c, k) * 1024, tag="wWo")
                for x in rds:
                    B.dep(x, w_, 4)
                w_.bonus = int(XOPT.get("wob", 2000))
                prevw.append(w_)
    gl, twr = {}, []
    for m in "qkv":
        for a in range(2):
            res = V6(B, "res" + m)
            for c in range(3):
                gl[m, a, c] = g_chain(B, HL[a], m, c, res[2 * c:2 * c + 2], transposed=True, tag=f"L{m}{a}{c}")
                if m == "v":
                    twr.append(B.dsw("ds_write_b64", tv[a], res[2 * c:2 * c + 2], 32 * c, tag="wT"))
                else:
                    twr.append(B.dsw("ds_write_b64", tk[a], res[2 * c:2 * c + 2], (768 if m == "q" else 0) + 8 * c, tag="wT"))
            if m == "q":
                stash(res[0:4], 7 + 2 * a)
                stash(res[4:6], 8 + 2 * a, "buffer_store_dwordx2")
    B.after(be, twr)
    Q0, K0 = V6(B, "Q0"), V6(B, "K0")
    gq = [g_chain(B, H0, "q", c, Q0[2 * c:2 * c + 2], tag="q0") for c in range(3)]
    gk = [g_chain(B, H0, "k", c, K0[2 * c:2 * c + 2], tag="k0") for c in range(3)]
    cvb = lambda t: t[0] + flat(t[1])
    L_ = lambda m, a: flat([gl[m, a, c] for c in range(3)])
    bb = cvb(cl_[0]) + cvb(cl_[1]) + [ba, bbar] + cvb(cv[0]) + cvb(cv[1]) + cvb(cv[2])
    bb += L_("q", 0) + [bc] + L_("q", 1) + L_("k", 0) + [bd] + L_("k", 1) + flat(gq) + flat(gk) + [be] + L_("v", 0) + L_("v", 1)
    bb += body(B, 0, "first", dict(H0=H0, Q0=Q0, K0=K0, bd=bd, twr=twr, xdma=dm1[-1], vmlast=chain[0], ostage=urd[18], late=urd[19] + urd[20]))
    return finish(B, bb)


STAMP = ["s_waitcnt lgkmcnt(0)", "s_memtime s[100:101]", "s_waitcnt lgkmcnt(0)", "v_mov_b32 v1, s100", "buffer_store_dword v1, off, s[12:15], s99",
         "s_memrealtime s[100:101]", "s_waitcnt lgkmcnt(0)", "v_mov_b32 v1, s100", "buffer_store_dword v1, off, s[12:15], s99 offset:4",
         "s_addk_i32 s99, 8"]


def add_stamps(lines, every_bar):
    out = []
    st = ["  s_cselect_b32 s69, 1, 0"] + ["  " + x for x in STAMP] + ["  s_cmp_eq_u32 s69, 1"]
    bars = [i for i, l in enumerate(lines) if l.startswith("  s_barrier")]
    for i, l in enumerate(lines):
        out.append(l)
        if l.startswith("  s_barrier") and (every_bar or i == bars[-1]):
            out += st
    lines[:] = out


def build(comments=False, diag=0):
    ind = lambda L: ["  " + x for x in L]
    s0 = ind(setup())
    s1 = ind(consts())
    b0 = pre_first().lines(comments) + ind(["s_mov_b32 s70, 10"])

    def mk(name, p, mode):
        B = new_block(name)
        return finish(B, body(B, p, mode)).lines(comments)
    bodd = mk("odd", 1, "mid") + ind(["s_sub_u32 s70, s70, 1", "s_cmp_eq_u32 s70, 0", "s_cbranch_scc1 L_last"])
    bev = mk("even", 0, "mid") + ind(["s_branch L_loop"])
    bl = mk("last", 0, "last")
    if diag:
        k = s0.index("  s_waitcnt lgkmcnt(0)") + 1
        s0[k:k] = ind(["s_mov_b32 s12, s46", "s_mov_b32 s13, s47", f"s_mov_b32 s14, {256 * WS_PER_WG}", "s_mov_b32 s15, 0x20000",
                       f"s_mul_i32 s99, s2, {WS_PER_WG}", "s_lshl_b32 s69, s28, 11", "s_add_u32 s99, s99, s69", "s_add_u32 s99, s99, 49152"] + STAMP)
        s0 += ind(STAMP)
        s1 += ind(STAMP)
        for b_ in (b0, bodd, bev, bl):
            add_stamps(b_, diag > 1 or b_ is b0)
        bl += ind(STAMP + ["s_waitcnt vmcnt(0)"] + STAMP)
    if "probe" in XOPT:
        keep = XOPT["probe"]
        isl = lambda l: l.startswith("  buffer_load") and " lds" in l
        if "l" not in keep:
            s0[:] = [l for l in s0 if not (isl(l) and f"v{V_LEFT}," in l)]
        if "x" not in keep:
            s0[:] = [l for l in s0 if not (isl(l) and f"v{T3}," in l)]
        if "w" not in keep:
            s0[:] = [l for l in s0 if not (isl(l) and "s98" in l)]
        s0 += ind(["s_waitcnt vmcnt(0)"] + STAMP)
        if "W" in keep:
            for i in range(3, 24):
                srd, so, ar = unit_src(i)
                s0 += ind([f"s_add_u32 m0, s81, {3072 * (i % 9)}", f"s_mov_b32 s98, {so}", "s_waitcnt vmcnt(30)"])
                for q in range(3):
                    s0.append(f"  buffer_load_dwordx4 v{ar[q]}, {srd}, s98 offen" + (f" offset:{1024 * q}" if q else "") + " lds")
            s0 += ind(["s_waitcnt vmcnt(0)"] + STAMP)
        if "X" in keep:
            for rep in range(3):
                s0 += ind(win_calc() + [f"v_cndmask_b32 v{T3}, v{vDma.pin}, 2.0, s[52:53]", "s_mov_b32 m0, s58"])
                for q in range(9):
                    if q == 5:
                        s0.append("  s_mov_b32 m0, s59")
                    o = 864 * (q if q < 5 else q - 5)
                    s0.append(f"  buffer_load_dwordx4 v{T3}, {sX}, s{36 + q} offen" + (f" offset:{o}" if o else "") + " lds")
                s0 += ind(["s_waitcnt vmcnt(0)"] + STAMP)
        s0 += ind(["s_waitcnt vmcnt(0)", "s_endpgm"])
    if "fine" in XOPT:
        import re
        lo, step = map(int, XOPT["fine"].split(":"))
        for b_ in (bodd, bev):
            mi = [i for i, l in enumerate(b_) if "mfma" in l]
            pos = []
            for n in range(8):
                m = lo + n * step
                while b_[mi[m] + 1].startswith("  s_") or "16x16x16" in b_[mi[m]]:
                    m += 1
                pos.append(mi[m])
            print("fine stamps at model times", [re.search(r"@(\d+)", b_[i]).group(1) for i in pos])
            for n in reversed(range(8)):
                b_.insert(pos[n] + 1, f"  s_memtime s[{82 + 2 * n}:{83 + 2 * n}]")
            k = max(i for i, l in enumerate(b_) if l.startswith("  s_barrier")) + 1
            dump = ["s_waitcnt lgkmcnt(0)"]
            for n in range(8):
                dump += [f"v_mov_b32 v1, s{82 + 2 * n}", f"buffer_store_dword v1, off, s[12:15], s99 offset:{8 * n}"]
            b_[k:k] = ind(dump + ["s_addk_i32 s99, 64"])
    if "enc" in XOPT:
        mode, k_ = XOPT["enc"].split(":")
        k = s0.index("  s_waitcnt lgkmcnt(0)")
        s0[k:k] = ind(["s_memrealtime s[100:101]", "s_memtime s[66:67]"])
        s0[k + 3:k + 3] = ind(["s_mov_b32 s99, s100", "s_mov_b32 s3, s66"])
        if mode in ("rt", "cy"):
            st_ = ind(["s_waitcnt lgkmcnt(0)", "s_memrealtime s[100:101]" if mode == "rt" else "s_memtime s[100:101]", "s_waitcnt lgkmcnt(0)"])
            if k_ == "end":
                bl += st_
            else:
                bars = [i for i, l in enumerate(b0) if l.startswith("  s_barrier")]
                b0[bars[int(k_)] + 1:bars[int(k_)] + 1] = st_
            if mode == "rt":
                bl += ind(["s_sub_u32 s101, s100, s99"])
            else:
                bl += ind(["s_sub_u32 s101, s100, s3", "s_mul_i32 s101, s101, 6554", "s_lshr_b32 s101, s101, 16"])
            if k_ != "end":
                bl += ind(["s_lshl_b32 s101, s101, 2"])
            bl += ind(["s_add_u32 s101, s101, 15000"])
        else:
            bl += ind(["s_mov_b32 s101, 15000"])
        bl += ["L_spin:"] + ind(["s_memrealtime s[60:61]", "s_waitcnt lgkmcnt(0)", "s_sub_u32 s60, s60, s99", "s_cmp_lt_u32 s60, s101", "s_cbranch_scc1 L_spin"])
    for b_ in (bodd, bev):
        if "nostore" in XOPT:
            b_[:] = [l for l in b_ if not l.startswith("  buffer_store_dwordx")]
        if "idle" in XOPT:
            k = max(i for i, l in enumerate(b_) if l.startswith("  s_barrier"))
            b_[k:k] = ["  s_nop 15"] * (int(XOPT["idle"]) // 64)
        if "kill" in XOPT:
            pat = XOPT["kill"].split(",")
            b_[:] = [("  s_nop 0" if any(p_ in l for p_ in pat) else l) for l in b_]
        if "nodma" in XOPT:
            b_[:] = [l for l in b_ if not (l.startswith("  buffer_load") and " lds" in l)]
    paths = [[s0, s1, b0, bodd, bev, bodd, bl]]
    n = check.fix_hazards(paths)
    print("inserted nops:", n)
    for p_ in paths:
        errs = check.check_waits(p_)
        assert not errs, "\n".join(errs[:20])
    ref = open(os.path.join(os.path.dirname(os.path.abspath(__file__)), "..", NAME + ".s.ref")).read()
    head = ref[:ref.index("; Override launch")]
    out = [head.rstrip(), f"; @launch grid=(256,1,1) block=(256,1,1) lds={LDS_BYTES}",
           "; generated by gen/kernel.py", '.amdgcn_target "amdgcn-amd-amdhsa--gfx950"', ".text", f".globl {NAME}_kernel", ".p2align 8",
           f".type {NAME}_kernel,@function", f"{NAME}_kernel:"]
    out += s0 + s1 + b0 + [".p2align 6", "L_loop:"] + bodd + bev + ["L_last:"] + bl
    out += ["L_exit:", "  s_endpgm", '.section .rodata,"a"', ".p2align 6", f".amdhsa_kernel {NAME}_kernel",
            "  .amdhsa_next_free_vgpr 512", "  .amdhsa_next_free_sgpr 102", "  .amdhsa_accum_offset 256",
            "  .amdhsa_group_segment_fixed_size 0", "  .amdhsa_kernarg_size 56", "  .amdhsa_user_sgpr_count 2",
            "  .amdhsa_user_sgpr_kernarg_segment_ptr 1", "  .amdhsa_system_sgpr_workgroup_id_x 1", ".end_amdhsa_kernel", ""]
    return "\n".join(out)


if __name__ == "__main__":
    dst = sys.argv[1] if len(sys.argv) > 1 else os.path.join(os.path.dirname(os.path.abspath(__file__)), "..", NAME + ".s")
    txt = build(comments="-c" in sys.argv, diag=2 if "-d2" in sys.argv else (1 if "-d" in sys.argv else 0))
    open(dst, "w").write(txt)
    print("wrote", dst, len(txt), "bytes")
```

```python
import sys, os, struct, math
sys.path.insert(0, os.path.dirname(os.path.abspath(__file__)))
from core import *
import check

NAME = "standalone__window_attn_davit__vision"
ROWB = 196224
XBYTES = 100270464
SHIFT = 0x30000
OOB = 0x10000000
NWIN = 21
PERX = 667
XOPT = {a[2:].split("=")[0]: (a.split("=")[1] if "=" in a else True) for a in sys.argv if a.startswith("-x")}
NRES = int(XOPT.get("nres", 3))
NT = {"0": "", "1": " nt"}[XOPT.get("nt", "0")]
STF = {"0": "", "nt": " nt", "sc1": " sc1", "sc0sc1": " sc0 sc1", "sc1nt": " sc1 nt"}[XOPT.get("stf", "0")]
TS = 1160
LDS_BYTES = 163840
L_S, L_H, L_O = 0, 2048, 20480
L_T = 38912
L_WO = (L_T + NWIN * TS + 15) // 16 * 16
WO_W = (18 - NRES) * 1024
L_FLAG = LDS_BYTES - 128
L_X = L_FLAG - 4 * 7936
assert L_WO + 4 * WO_W <= L_X
L_STAGE, STAGE_W = L_O, 27872
assert L_STAGE + 4 * STAGE_W <= L_X
WS_PER_WG = 65536


def f32(x):
    return "0x%08x" % struct.unpack("<I", struct.pack("<f", x))[0]


ALPHA = math.sqrt(48 ** -0.5 * math.log2(math.e))

def token_map():
    byres = {r: [] for r in range(8)}
    for y in range(7):
        for x in range(7):
            if (y, x) != (3, 3):
                byres[(x + y) % 8].append((y, x))
    sets = [[byres[r][s] for r in range(8)] for s in range(6)]
    tok = []
    for j in range(3):
        a, b = sorted(sets[2 * j]), sorted(sets[2 * j + 1])
        tok.append(a[:4] + b + a[4:])
    return tok


TOK = token_map()

def P(name, n, cls, pin):
    return Val(name, n, cls, pin=pin, persistent=True)


vIdx, vGuard, vCm = P("idx", 1, "v", 0), P("guard", 1, "v", 1), P("cmask", 1, "v", 2)
cH = [P(f"cH{j}", 1, "v", 3 + j) for j in range(3)]
cV = [P(f"cV{j}", 1, "v", 6 + j) for j in range(3)]
cD = [P(f"cD{j}", 1, "v", 9 + j) for j in range(3)]
vSt = [P(f"st{j}", 1, "v", 12 + j) for j in range(3)]
vRd, vWr4, vWr2, vWo = P("rd", 1, "v", 15), P("wr4", 1, "v", 16), P("wr2", 1, "v", 17), P("wo", 1, "v", 18)
vTk, vTv, vDma = P("tk", 1, "v", 19), P("tv", 1, "v", 20), P("dma", 1, "v", 21)
vStM, vStX = P("stm", 1, "v", 22), P("stx", 1, "v", 23)
vPf, vSink = P("pf", 1, "v", 24), P("sink", 1, "v", 25)
X = [[[P(f"X{p}{j}{c}", 4, "v", 26 + 36 * p + 12 * j + 4 * c) for c in range(3)] for j in range(3)] for p in range(2)]
_b = 98 + 4 * (NRES - 1)
V2_PIN = [_b, _b + 4, _b + 8]
vSw, vBw, vBr = P("sw", 1, "v", _b + 3), P("bw", 1, "v", _b + 7), P("br", 1, "v", _b + 11)
P2_PIN = [_b + 12, _b + 16]
ZREGS = [_b + 15, _b + 19]
H0_PIN = [_b + 20 + 4 * k for k in range(6)]
Q0_PIN, K0_PIN, ACC_PIN = (_b + 44, _b + 56), (_b + 48, _b + 58), _b + 52
Block.quad_base = _b % 4
POOL = {"v": set(range(_b, 256)) - {_b + 3, _b + 7, _b + 11, _b + 15, _b + 19}, "a": set()}

W = {m: [[P(f"W{m}{c}{k}", 4, "a", 72 * i + 24 * c + 4 * k) for k in range(6)] for c in range(3)] for i, m in enumerate("qkv")}
CW1 = [P(f"cw1{c}", 4, "a", 216 + 10 * c) for c in range(3)]
CW2 = [P(f"cw2{c}", 4, "a", 220 + 10 * c) for c in range(3)]
CWD = [P(f"cwd{c}", 2, "a", 224 + 10 * c) for c in range(3)]
ONES = P("ones", 4, "a", 246)
WOR = [P("wores0", 4, "a", 250)] + [P(f"wores{i}", 4, "v", 98 + 4 * (i - 1)) for i in range(1, NRES)]

sX, sOUT, sWS, sWQ, sWO, sDW = "s[4:7]", "s[8:11]", "s[12:15]", "s[16:19]", "s[20:23]", "s[24:27]"
MG0, MG1 = "s[54:55]", "s[56:57]"

CVT = "v_cvt_pk_bf16_f32 {0}, {1}, {2}"


def wo_slot(c, k):
    assert NRES == 3
    return 3 * {0: -1, 1: 0, 4: 1, 2: 2, 3: 3, 5: 4}[k] + c


def g_load(B, slot, pins=None, live_out=False, window=int(XOPT.get('wh', 4)), host=None):
    H, ops = [], []
    for k in range(6):
        v = host.pop() if host else B.val(f"H{slot}_{k}", 4, pin=pins[k] if pins else None, live_out=live_out)
        ops.append(B.dsr("ds_read_b128", v, vRd, L_H + slot * 6144 + k * 1024, window=window, tag=f"H{slot}.{k}"))
        H.append(v)
    return H, ops


def g_chain(B, H, m, c, dst, acc=None, transposed=None, tag=""):
    if transposed is None:
        transposed = m != "v"
    if acc is None:
        acc = B.val(f"acc{tag}", 4)
    ms = []
    for k in range(6):
        a, b = (W[m][c][k], H[k]) if transposed else (H[k], W[m][c][k])
        ms.append(B.mfma("m32", acc, a, b, acc if k else None, tag=f"G{tag}.{k}"))
    if dst is not None:
        pack(B, dst, acc, tag)
    return ms


def pack(B, dst, acc, tag=""):
    dst = R(dst)
    acc = R(acc)
    r = []
    for h in range(2):
        r.append(B.valu(CVT, Ref(dst.val, dst.off + h, 1), Ref(acc.val, acc.off + 2 * h, 1), Ref(acc.val, acc.off + 2 * h + 1, 1), tag="cvt" + tag))
        r[-1].drain = not acc.val.persistent
    return r


def s_mfma(B, K, Q, left, tag):
    acc = B.val("S" + tag, 4)
    m16 = B.mfma("m16", acc, K[4:6], Q[4:6], vCm.all().wide(4) if left else None, tag="S16." + tag)
    m32 = B.mfma("m32", acc, K[0:4], Q[0:4], acc, tag="S32." + tag)
    return acc, m16, m32


def s_tile(B, K, Q, dst, left=False, tag=""):
    acc, m16, m32 = s_mfma(B, K, Q, left, tag)
    if left:
        B.valu("v_exp_f32 {0}, {1}", acc[0], acc[0], kind="trans", tag="exp" + tag).drain = True
        B.valu(CVT, dst, acc[0], "0", tag="cvtP" + tag).drain = True
    else:
        for r in range(4):
            B.valu("v_exp_f32 {0}, {1}", acc[r], acc[r], kind="trans", tag="exp" + tag).drain = True
        pack(B, dst, acc, "P" + tag)
    return m16, m32


def s_batch(pairs):
    return [p[0] for p in pairs] + [p[1] for p in pairs]


def pv_tile(B, j, P1, P2, V1, V2, guard=True):
    l = B.val(f"l{j}", 4)
    O = [B.val(f"O{j}{c}", 4) for c in range(3)]
    p2 = P2.all().wide(4)
    ms = [B.mfma("m32", l, ONES, P1, tag=f"RS{j}"), B.mfma("m32", l, ONES, p2, l, tag=f"RS{j}")]
    for c in range(3):
        ms += [B.mfma("m32", O[c], V1[c], P1, tag=f"PV{j}{c}"), B.mfma("m32", O[c], V2[c].all().wide(4), p2, O[c], tag=f"PV{j}{c}")]
    ri = B.val(f"ri{j}")
    B.valu("v_mul_f32 {0}, {1}, {2}", l[0], f32(ALPHA), l[0], tag="lmul")
    B.valu("v_rcp_f32 {0}, {1}", ri, l[0], kind="trans", tag="rcp")
    if guard:
        B.valu("v_max3_f32 {0}, {0}, {1}, {2}", vGuard, l[0], ri, rmw=True, tag="guard")
    o4, o2 = B.val(f"o4{j}", 4), B.val(f"o2{j}", 2)
    for c in range(3):
        for r in range(4):
            B.valu("v_mul_f32 {0}, {1}, {2}", O[c][r], O[c][r], ri, tag="onorm")
        pack(B, o4[2 * c:2 * c + 2] if c < 2 else o2, O[c], f"O{j}")
    wr = [B.dsw("ds_write_b128", vWr4, o4, L_O + j * 6144, tag=f"wO{j}"), B.dsw("ds_write_b64", vWr2, o2, L_O + j * 6144, tag=f"wO{j}")]
    return ms, wr


def pv_left(B, P1, P2, V1, V2, guard=True):
    l = B.val("lL", 4)
    O = [B.val(f"OL{c}", 4) for c in range(3)]
    p2 = P2.all().wide(4)
    ms = [B.mfma("m32", l, P1, ONES, tag="RSL"), B.mfma("m32", l, p2, ONES, l, tag="RSL")]
    for c in range(3):
        ms += [B.mfma("m32", O[c], P1, V1[c], tag=f"PVL{c}"), B.mfma("m32", O[c], p2, V2[c].all().wide(4), O[c], tag=f"PVL{c}")]
    ri = B.val("riL")
    B.valu("v_mul_f32 {0}, {1}, {2}", l[0], f32(ALPHA), l[0], tag="lmul")
    B.valu("v_rcp_f32 {0}, {1}", ri, l[0], kind="trans", tag="rcp")
    if guard:
        B.valu("v_max3_f32 {0}, {0}, {1}, {2}", vGuard, l[0], ri, rmw=True, tag="guard")
    t = B.val("oL")
    B.valu("v_cndmask_b32 {0}, {1}, {2}, " + MG0, t, O[1][0], O[0][0], tag="selL")
    B.valu("v_cndmask_b32 {0}, {1}, {2}, " + MG1, t, O[2][0], t, tag="selL")
    B.valu("v_mul_f32 {0}, {1}, {2}", t, t, ri, tag="onormL")
    B.valu(CVT, t, t, t, tag="cvtL")
    wr = B.dsw("ds_write_b16", vTv, t, 384, tag="wOL")
    return ms, wr


def conv_mfmas(B, Xd, c, b1, b2, bd, tag):
    m0 = B.mfma("m16", Xd, CWD[c], bd, tag="C16." + tag)
    m1 = B.mfma("sm", Xd, CW1[c], b1, idx=vIdx, tag="Cs1." + tag)
    m2 = B.mfma("sm", Xd, CW2[c], b2, idx=vIdx, tag="Cs2." + tag)
    return m0, m1, m2


def conv_tile(B, Xj, j, window=int(XOPT.get('wc', 4)), addr=None, row=864):
    aH, aV, aD, base = addr or (cH[j], cV[j], cD[j], 0)
    k16, sms, rds = [], [], []
    for c in range(3):
        bd, b1, b2 = B.val(f"bd{j}{c}", 2), B.val(f"b1{j}{c}", 8), B.val(f"b2{j}{c}", 8)
        o = base + 32 * c
        rds.append(B.dsr("ds_read_b64", bd, aD, o, occ=16, window=window, tag="xr"))
        rds.append(B.dsr("ds_read_b128", b1[0:4], aH, o, window=window, tag="xr"))
        rds.append(B.dsr("ds_read_b128", b1[4:8], aH, o + row, window=window, tag="xr"))
        rds.append(B.dsr("ds_read_b128", b2[0:4], aH, o + 2 * row, window=window, tag="xr"))
        rds.append(B.dsr("ds_read_b128", b2[4:8], aV, o, window=window, tag="xr"))
        m0, m1, m2 = conv_mfmas(B, Xj[c], c, b1, b2, bd, f"{j}{c}")
        k16.append(m0)
        sms.append([m1, m2])
    return k16, sms, rds


def ln1(B, tiles, sb=L_S):
    e = []
    for j, Xj in enumerate(tiles):
        a, b = B.val(f"sa{j}"), B.val(f"sb{j}")
        xs = [Xj[c][r] for c in range(3) for r in range(4)]
        B.valu("v_add_f32 {0}, {1}, {2}", a, xs[0], xs[1], tag="st")
        B.valu("v_mul_f32 {0}, {1}, {2}", b, xs[0], xs[0], tag="st")
        B.valu("v_fmac_f32 {0}, {1}, {2}", b, xs[1], xs[1], rmw=True, tag="st")
        for x in xs[2:]:
            B.valu("v_add_f32 {0}, {1}, {2}", a, a, x, tag="st")
            B.valu("v_fmac_f32 {0}, {1}, {2}", b, x, x, rmw=True, tag="st")
        B.swap(32, a, b, tag="st")
        B.valu("v_add_f32 {0}, {1}, {2}", a, a, b, tag="st")
        e.append(a)
    wr = []
    B.swap(16, e[0], e[1], tag="st")
    B.valu("v_add_f32 {0}, {1}, {2}", e[0], e[0], e[1], tag="st")
    wr.append(B.dsw("ds_write_b32", vSw, e[0], sb, tag="wS"))
    if len(tiles) > 2:
        t = B.val("se2")
        B.valu("v_mov_b32 {0}, {1}", t, e[2], tag="st")
        B.swap(16, e[2], t, tag="st")
        B.valu("v_add_f32 {0}, {1}, {2}", e[2], e[2], t, tag="st")
        wr.append(B.dsw("ds_write_b32", vSw, e[2], sb + 512, tag="wS"))
    return wr


def ln2_head(B, sb=L_S):
    a, b = B.val("ra", 4), B.val("rb", 4)
    rd = [B.dsr("ds_read_b128", a, vRd, sb, window=None, tag="rS"), B.dsr("ds_read_b128", b, vRd, sb + 1024, window=None, tag="rS")]
    for v in (a, b):
        B.valu("v_add_f32 {0}, {1}, {2}", v[0], v[0], v[1], tag="ln")
        B.valu("v_add_f32 {0}, {1}, {2}", v[2], v[2], v[3], tag="ln")
        B.valu("v_add_f32 {0}, {1}, {2}", v[0], v[0], v[2], tag="ln")
    E = 192 * 1e-5
    B.valu("v_mul_f32 {0}, {1}, {2}", a[1], f32(1.0 / 192), a[0], tag="ln")
    B.valu("v_fma_f32 {0}, -{1}, {2}, {3}", b[0], a[1], a[0], b[0], tag="ln")
    B.valu("v_max_f32 {0}, 0, {1}", b[0], b[0], tag="ln")
    B.valu("v_add_f32 {0}, {1}, {2}", b[0], f32(E), b[0], tag="ln")
    B.valu("v_rsq_f32 {0}, {1}", b[0], b[0], kind="trans", tag="ln")
    B.valu("v_mul_f32 {0}, {1}, {2}", b[0], f32(ALPHA * math.sqrt(192.0)), b[0], tag="ln")
    B.valu("v_mul_f32 {0}, -{1}, {2}", b[1], a[1], b[0], tag="ln")
    wr = B.dsw("ds_write_b64", vBw, b[0:2], sb, tag="wB")
    return rd, wr


BC_OFF = [768, 768 + 128, 1792]


def ln2_tile(B, Xj, j, slot, sb=L_S):
    rn = B.val(f"rn{j}", 2)
    rd = B.dsr("ds_read_b64", rn, vBr, sb + BC_OFF[j], window=None, tag="rB")
    h4, h2 = B.val(f"h4{j}", 4), B.val(f"h2{j}", 2)
    for c in range(3):
        for h in range(2):
            d = h4[2 * c + h] if c < 2 else h2[h]
            t = B.val("ht")
            B.valu("v_fma_f32 {0}, {1}, {2}, {3}", d, Xj[c][2 * h], rn[0], rn[1], tag="nrm")
            B.valu("v_fma_f32 {0}, {1}, {2}, {3}", t, Xj[c][2 * h + 1], rn[0], rn[1], tag="nrm")
            B.valu(CVT, d, d, t, tag="cvth").bonus = 24
    wr = [B.dsw("ds_write_b128", vWr4, h4, L_H + slot * 6144, tag=f"wh{slot}"), B.dsw("ds_write_b64", vWr2, h2, L_H + slot * 6144, tag=f"wh{slot}")]
    return rd, wr


def wo_frag(B, c, k, window):
    if wo_slot(c, k) < 0:
        return WOR[3 * k + c]
    v = B.val(f"wo{c}{k}", 4)
    B.wo_reads.append(B.dsr("ds_read_b128", v, vWo, wo_slot(c, k) * 1024, window=window, tag=f"rWo{c}{k}"))
    return v


def proj(B, tiles, window=int(XOPT.get('wp', 6))):
    steps, rds = [], []
    for k in range(6):
        wo = [wo_frag(B, c, k, window) for c in range(3)]
        st = []
        for j, (Xj, ld) in enumerate(tiles):
            o, r = ld(k)
            rds += r
            for c in range(3):
                st.append(B.mfma("m32", Xj[c], wo[c], o, Xj[c], tag=f"P{k}.{j}{c}"))
        steps.append(st)
    return steps, rds


def proj_tile(B, wo, Xj, ld, tag):
    fr, rds = [], []
    for k in range(6):
        o, r = ld(k)
        fr.append(o)
        rds += r
    return [[B.mfma("m32", Xj[c], wo[c][k], fr[k], Xj[c], tag=f"P{tag}{c}.{k}") for k in range(6)] for c in range(3)], rds


def o_loader(B, j, window=int(XOPT.get('wp', 6))):
    def ld(k):
        v = B.val(f"of{j}{k}", 4)
        return v, [B.dsr("ds_read_b128", v, vRd, L_O + j * 6144 + k * 1024, window=window, tag=f"rO{j}{k}")]
    return ld


def store_pair(B, xa, xb, addr, soff, occ=264):
    pk = B.val("opk", 4)
    pack(B, pk[0:2], xa, "out")
    pack(B, pk[2:4], xb, "out")
    B.swap(16, pk[0], pk[2], tag="oswap")
    B.swap(16, pk[1], pk[3], tag="oswap")
    return B.vms("buffer_store_dwordx4", pk, addr, sOUT, soff, 0, extra=STF, tag="store", occ=occ)


def out_store(B, Xs, soff):
    sts = [store_pair(B, Xs[0][0], Xs[0][1], vSt[0], soff), store_pair(B, Xs[1][0], Xs[1][1], vSt[1], soff),
           store_pair(B, Xs[0][2], Xs[1][2], vStM, soff), store_pair(B, Xs[2][0], Xs[2][1], vSt[2], soff)]
    pk = B.val("opk", 2)
    pack(B, pk, Xs[2][2], "out")
    sts.append(B.vms("buffer_store_dwordx2", pk, vStX, sOUT, soff, 0, extra=STF, tag="store"))
    return sts


MAGIC, MSH = 7183, 22
assert all((q * MAGIC) >> MSH == q // 584 for q in range(6200))


def win_calc():
    L = ["s_lshl_b32 s60, s31, 5", "s_add_u32 s61, s60, s30", "s_add_u32 s60, s60, s29",
         f"s_mul_i32 s62, s60, {MAGIC}", f"s_lshr_b32 s62, s62, {MSH}", "s_mul_i32 s63, s62, 584", "s_sub_u32 s63, s60, s63",
         "s_lshr_b32 s64, s63, 3", "s_and_b32 s65, s63, 7", "s_lshl_b32 s66, s62, 3", "s_add_u32 s65, s65, s66",
         "s_cmp_ge_u32 s60, 5256", "s_cselect_b32 s64, s63, s64", "s_cselect_b32 s65, 72, s65",
         f"s_mul_i32 s66, s65, {7 * ROWB}", "s_mul_i32 s67, s64, 2688", "s_add_u32 s35, s66, s67",
         f"s_cmp_ge_u32 s61, {PERX}", f"s_cselect_b32 s35, {OOB}, s35",
         "s_cmp_ge_u32 s60, 5329", f"s_cselect_b32 s35, {OOB}, s35",
         "s_cmp_eq_u32 s65, 0", f"s_cselect_b32 s36, {OOB}, s35"]
    for r in range(1, 9):
        rr = r if r < 5 else r - 5
        L.append(f"s_add_u32 s{36 + r}, s35, {r * ROWB - 864 * rr}")
    L += ["s_cmp_eq_u32 s64, 0", "s_cselect_b64 s[52:53], s[48:49], 0", "s_cmp_eq_u32 s64, 72", "s_cselect_b64 s[52:53], s[50:51], s[52:53]",
          "s_add_u32 s31, s31, 1"]
    return L


def x_dma(B, lat=300):
    a = B.val("dmaaddr")
    cm = B.valu("v_cndmask_b32 {0}, {1}, 2.0, s[52:53]", a, vDma, tag="dmaaddr")
    dm = []
    m0 = m0first = B.salu("s_mov_b32 m0, s58", tag="m0")
    for r in range(9):
        if r == 5:
            m0 = B.salu("s_mov_b32 m0, s59", tag="m0")
            B.dep(dm[-1], m0, 4)
        d = B.dma(a, sX, f"s{36 + r}", 864 * (r if r < 5 else r - 5), extra=NT, tag=f"dma{r}")
        d.lat = lat
        B.dep(m0, d, 8)
        if dm:
            B.dep(dm[-1], d, int(XOPT.get("dsp", 112)))
        dm.append(d)
    return cm, m0first, dm


def x_prefetch(B, after):
    calc = [B.salu(x, tag="win") for x in win_calc() +
            [f"s_sub_u32 s68, s35, {SHIFT}", "s_cselect_b32 s68, s35, s68"]]
    for x in after:
        B.dep(x, calc[0], 4)
    pf = B.add(Op("vml", f"buffer_load_dword {{0}}, {{1}}, {sDW}, s68 offen", [vSink, vPf], [], [vPf], slots=2, occ=256, tag="prefetch"))
    B.dep(calc[-1], pf, 4)
    return calc, pf


def rotate(B, after):
    ops = [B.salu("s_mov_b32 s32, s33"), B.salu("s_mov_b32 s33, s34"), B.salu("s_mov_b32 s34, s35")]
    for x in after:
        B.dep(x, ops[0], 4)
    return ops


def weave(*streams):
    items = []
    for si, s in enumerate(streams):
        n = len(s)
        for i, ch in enumerate(s):
            items.append(((i + 0.5) / n, si, ch))
    items.sort(key=lambda x: (x[0], x[1]))
    return [o for _, _, ch in items for o in ch]


def flat(l):
    r = []
    for x in l:
        if isinstance(x, (list, tuple)):
            r += flat(x)
        else:
            r.append(x)
    return r


def new_block(name):
    B = Block(name)
    B.wo_reads = []
    return B


def ws_slot(i):
    return ["s75", "s77", "s78"][i // 4], 1024 * (i % 4)


def table_reads(B, V2):
    KL, QL = V6(B, "KL"), V6(B, "QL")
    trd = [B.dsr("ds_read2_b64", QL[0:4], vTk, " offset0:96 offset1:97", occ=32, tag="rQL"), B.dsr("ds_read_b64", QL[4:6], vTk, 768 + 16, tag="rQL"),
           B.dsr("ds_read2_b64", KL[0:4], vTk, " offset0:0 offset1:1", occ=32, tag="rKL"), B.dsr("ds_read_b64", KL[4:6], vTk, 16, tag="rKL")]
    for c in range(3):
        trd.append(B.dsr("ds_read_u16", V2[c][2], vTv, 32 * c, tag="rVL"))
    B.valu(f"v_add_u32 {{0}}, {TS}, {{0}}", vTk, rmw=True, tag="tk")
    return KL, QL, trd


def body(B, p, mode="mid", inc=None):
    has_p, has_next = mode != "first", mode != "last"
    Xc, Xo = X[p], X[1 - p]
    if inc is None:
        H0 = [B.val(f"H0in{k}", 4, pin=H0_PIN[k], live_in=True) for k in range(6)]
        Q0, K0 = V6(B, "Q0", pin=Q0_PIN, live_in=True), V6(B, "K0", pin=K0_PIN, live_in=True)
        accx = B.val("accx", 4, pin=ACC_PIN, live_in=True, ready=24)
        pack(B, K0[4:6], accx, "K0")
    else:
        H0, Q0, K0 = inc["H0"], inc["Q0"], inc["K0"]
    Q = [Q0, V6(B, "Q1"), V6(B, "Q2")]
    K = [K0, V6(B, "K1"), V6(B, "K2")]
    V1 = [B.val(f"V1{c}", 4) for c in range(3)]
    V2 = [B.val(f"V2{c}", 3, pin=V2_PIN[c]) for c in range(3)]
    KL, QL, trd = table_reads(B, V2)
    gv0 = [g_chain(B, H0, "v", c, V1[c][0:2], tag=f"v0{c}") for c in range(3)]
    bs = B.bar("Bs")
    hwr = []
    if inc is None:
        b1 = B.bar("B1")
        for j in (1, 2):
            rd, wr = ln2_tile(B, Xc[j], j, j)
            B.before_bar([rd] + wr, b1)
            hwr += wr
    else:
        b1 = inc["bd"]
        for w_ in inc["twr"]:
            B.after(w_, trd)
        B.before_bar(inc["twr"], bs)
        B.after(bs, trd[4:])
    stores = []
    if has_p:
        psteps, ords = proj(B, [(Xo[j], o_loader(B, j)) for j in range(3)])
        B.before_bar(ords, bs)
        stores = out_store(B, Xo, "s32")
        for i, x in enumerate(stores):
            x.due = (psteps[5][-1], 264 * i)
    H1, r1 = g_load(B, 1)
    H2, r2 = g_load(B, 2)
    B.after(b1, r1 + r2)
    g1 = {m: [g_chain(B, H1, m, c, {"q": Q[1][2 * c:2 * c + 2], "k": K[1][2 * c:2 * c + 2], "v": V1[c][2:4]}[m], tag=f"{m}1{c}") for c in range(3)] for m in "qkv"}
    g2 = {m: [g_chain(B, H2, m, c, {"q": Q[2][2 * c:2 * c + 2], "k": K[2][2 * c:2 * c + 2], "v": V2[c][0:2]}[m], tag=f"{m}2{c}") for c in range(3)] for m in "qkv"}
    bh = B.bar("Bh") if has_next else None
    bo = B.bar("Bo")
    B.before_bar(r1 + r2, bo)
    if has_next:
        if inc is None:
            cm, m0, dm = x_dma(B)
            for w_ in hwr[:int(XOPT.get("dafter", 0))]:
                B.dep(w_, dm[0], 4)
            B.after(dm[-1], stores)
            xlast = dm[-1]
        else:
            xlast = inc["xdma"]
        cv = [conv_tile(B, Xo[j], j) for j in range(3)]
        xr = flat([c[2] for c in cv])
        B.after(xlast, xr, 0, "vm")
        calc, pf = x_prefetch(B, [inc["vmlast"] if inc else xlast])
        pf.bonus = 3000
        for x in stores:
            B.dep(x, pf, 4)
        swr = ln1(B, Xo)
        B.after(b1, swr)
        B.before_bar(swr, bs)
        srd, bwr = ln2_head(B)
        B.after(bs, srd)
        B.before_bar(srd, bh)
        rd, wr = ln2_tile(B, Xo[0], 0, 0)
        B.dep(bwr, rd, 4)
        B.before_bar(wr, bh)
        rotate(B, stores)
    P1 = [B.val(f"P1{j}", 4) for j in range(4)]
    order2 = [0, 1, 3, 2]
    P2 = {j: B.val(f"P2{j}", 3, pin=P2_PIN[i % 2]) for i, j in enumerate(order2)}
    Qs = Q + [QL]
    S = {}
    for j in order2:
        for i in range(2):
            S[i, j] = s_tile(B, K[i], Qs[j], P1[j][2 * i:2 * i + 2], tag=f"{i}{j}")
    pv = {}
    for n_, j in enumerate(order2):
        n0 = len(B.ops)
        S[2, j] = s_tile(B, K[2], Qs[j], P2[j][0:2], tag=f"2{j}")
        S[3, j] = s_tile(B, KL, Qs[j], P2[j][2], left=True, tag=f"3{j}")
        if n_ >= 2:
            for o in B.ops[n0:]:
                if any(d.val is P2[j] for d in o.defs):
                    for m in pv[order2[n_ - 2]]:
                        B.dep(m, o, 4)
        if j == 3:
            pv[j], w = pv_left(B, P1[j], P2[j], V1, V2)
            B.valu(f"v_add_u32 {{0}}, {TS}, {{0}}", vTv, rmw=True, tag="tv")
            B.before_bar([w], bo)
        else:
            pv[j], w = pv_tile(B, j, P1[j], P2[j], V1, V2)
            B.after(bs, w)
            B.before_bar(w, bo)
    if inc is not None:
        B.before_bar(inc["ostage"], bs)
        for o in inc["late"]:
            B.dep(pv[1][-1], o, 4)
            o.bonus = 2000
    if has_next:
        Hn, rn = g_load(B, 0, pins=H0_PIN, live_out=True)
        B.after(bh, rn)
        B.before_bar(rn, bo)
        Qn = V6(B, "Q0n", pin=Q0_PIN, live_out=True)
        Kn = V6(B, "K0n", pin=K0_PIN, live_out=True)
        accn = B.val("accn", 4, pin=ACC_PIN, live_out=True)
        n0 = len(B.ops)
        gq = [g_chain(B, Hn, "q", c, Qn[2 * c:2 * c + 2], tag=f"qn{c}") for c in range(3)]
        gk = [g_chain(B, Hn, "k", c, Kn[2 * c:2 * c + 2], tag=f"kn{c}") for c in range(2)]
        gk.append(g_chain(B, Hn, "k", 2, None, acc=accn, tag="kn2"))
        if inc is None:
            for k in range(6):
                B.dep(gv0[2][k], rn[k], 4)
            for o in B.ops[n0:]:
                for d in o.defs:
                    if Qn.has(d.val):
                        for i in range(4):
                            B.dep(S[i, 0][1], o, 4)
                    if Kn.has(d.val):
                        for j in range(4):
                            B.dep(S[0, j][1], o, 4)
    else:
        tail = post_ops(B, bo)
    bb = []
    g1l = g1["k"] + g1["q"] + g1["v"]
    cvw = lambda j, g: g[0] + cv[j][0] + cv[j][1][0] + g[1][:3] + cv[j][1][1] + g[1][3:] + cv[j][1][2]
    if mode == "first":
        bb += flat(gv0) + flat(g1l[:6]) + s_batch([S[0, 0], S[1, 0]]) + cvw(0, g1l[6:8]) + g1l[8]
        bb += s_batch([S[0, 1], S[1, 1]]) + cvw(1, g2["k"][:2]) + g2["k"][2] + s_batch([S[0, 3], S[1, 3]]) + cvw(2, g2["v"][:2])
        bb += s_batch([S[2, 0], S[3, 0]]) + g2["v"][2] + s_batch([S[2, 1], S[3, 1]]) + g2["q"][0] + [bs]
        bb += g2["q"][1] + pv[0] + s_batch([S[2, 3], S[3, 3]]) + pv[1] + g2["q"][2] + pv[3]
        bb += s_batch([S[0, 2], S[1, 2], S[2, 2], S[3, 2]]) + [bh] + gq[0] + gq[1] + pv[2] + gq[2] + gk[0] + gk[1] + gk[2] + [bo]
        return bb
    bb += gv0[0] + psteps[0] + gv0[1] + psteps[1] + gv0[2] + psteps[2]
    bb += s_batch([S[0, 0], S[0, 3]]) + psteps[3] + psteps[4] + [b1] + psteps[5]
    if has_next:
        for j in range(3):
            bb += cvw(j, g1l[3 * j:3 * j + 2]) + g1l[3 * j + 2]
    else:
        bb += flat(g1l)
    bb += s_batch([S[1, 0], S[0, 1]]) + g2["k"][0] + g2["k"][1] + [bs] + g2["k"][2]
    bb += s_batch([S[1, 1], S[1, 3]]) + g2["v"][0] + g2["v"][1] + s_batch([S[2, 0], S[3, 0]]) + g2["v"][2]
    bb += s_batch([S[2, 1], S[3, 1]]) + g2["q"][0] + pv[0] + g2["q"][1] + s_batch([S[2, 3], S[3, 3]]) + pv[1] + g2["q"][2]
    if has_next:
        bb += [bh] + pv[3] + s_batch([S[0, 2], S[1, 2], S[2, 2], S[3, 2]]) + gq[0] + gq[1] + gq[2] + pv[2] + gk[0] + gk[1] + gk[2] + [bo]
    else:
        pl0, rest = tail
        bb += pv[3] + s_batch([S[0, 2], S[1, 2], S[2, 2], S[3, 2]]) + pl0[0] + pl0[1] + pv[2] + pl0[2] + [bo] + rest
    return bb


def left_loader(B, addr):
    def ld(k):
        o0, o1 = (12 * k, 12 * k + 4) if k < 4 else (24 * (k - 4) + 8, 24 * (k - 4) + 20)
        v = B.val("ofl", 4)
        return v, [B.dsr("ds_read2_b64", v, addr, f" offset0:{o0} offset1:{o1}", occ=32)]
    return ld


def left_proj(B, wo):
    la = B.val("la", 4)
    B.vml("buffer_load_dwordx4", la, vRd, sWS, *ws_slot(6), tag="unstash")
    for a in range(2):
        for c in range(3):
            B.vml("buffer_load_dwordx4", X[1][a][c], vRd, sWS, *ws_slot(3 * a + c), tag="unstash")
    rd1 = B.val("rd1")
    B.valu(f"v_add_u32 {{0}}, {16 * TS}, {{1}}", rd1, la[3])
    pl0, r0 = proj_tile(B, wo, X[1][0], left_loader(B, la[3]), "L0")
    pl1, r1 = proj_tile(B, wo, X[1][1], left_loader(B, rd1), "L1")
    store_pair(B, X[1][0][0], X[1][0][1], la[0], "0")
    store_pair(B, X[1][0][2], X[1][1][2], la[2], "0", occ=200)
    store_pair(B, X[1][1][0], X[1][1][1], la[1], "0", occ=120)
    return pl0, r0, pl1, r1


def post_ops(B, bo):
    wo = [[wo_frag(B, c, k, 12) for k in range(6)] for c in range(3)]
    pl0, r0, pl1, r1 = left_proj(B, wo)
    B.after(bo, r1)
    rest = []
    for j in range(3):
        ch, r = proj_tile(B, wo, X[0][j], o_loader(B, j), f"W{j}")
        B.after(bo, r)
        rest.append(ch)
    out_store(B, X[0], "s33")
    gw = B.dsw("ds_write_b32", vSw, vGuard, L_S, tag="wguard")
    B.before_bar([gw], bo)
    ga, gv = B.val("ga"), B.val("gv", 4)
    B.valu("v_and_b32 {0}, -16, {1}", ga, vSw)
    gr = B.dsr("ds_read_b128", gv, ga, L_S, window=None, tag="rguard")
    B.after(bo, [gr])
    B.valu("v_max3_f32 {0}, {1}, {2}, {3}", vGuard, gv[0], gv[1], gv[2])
    B.valu("v_max_f32 {0}, {0}, {1}", vGuard, gv[3], rmw=True)
    return pl0, flat(rest[0] + rest[1] + rest[2] + pl1)


def safe_prologue():
    B = new_block("safe0")
    tk = [B.val("tk", 1, pin=p, live_in=True) for p in PRE_TK]
    for a in range(2):
        q = V6(B, "q")
        B.vml("buffer_load_dwordx4", q[0:4], vRd, sWS, *ws_slot(7 + 2 * a))
        B.vml("buffer_load_dwordx2", q[4:6], vRd, sWS, *ws_slot(8 + 2 * a))
        for c in range(3):
            B.dsw("ds_write_b64", tk[a], q[2 * c:2 * c + 2], 768 + 8 * c)
    return finish(B, [])


def safe_body():
    B = new_block("safe")
    Xc = X[0]
    calc = [B.salu(x, tag="win") for x in win_calc()]
    cm, m0, dm = x_dma(B, lat=1500)
    B.dep(calc[-1], cm, 4)
    bb = []
    for j in range(3):
        k16, sms, rds = conv_tile(B, Xc[j], j)
        B.after(dm[-1], rds, 0, "vm")
        bb += k16 + flat(sms)
    b1, b2, b3 = B.bar("S1"), B.bar("S2"), B.bar("S3")
    B.before_bar(ln1(B, Xc), b1)
    srd, bwr = ln2_head(B)
    B.after(b1, srd)
    B.before_bar(srd, b2)
    for j in range(3):
        rd, wr = ln2_tile(B, Xc[j], j, j)
        B.dep(bwr, rd, 4)
        B.before_bar([rd] + wr, b2)
    bb += [b1, b2]
    Q, K = [V6(B, f"Q{j}") for j in range(3)], [V6(B, f"K{j}") for j in range(3)]
    V1 = [B.val(f"V1{c}", 4) for c in range(3)]
    V2 = [B.val(f"V2{c}", 3, pin=V2_PIN[c]) for c in range(3)]
    KL, QL, trd = table_reads(B, V2)
    B.after(b1, trd)
    for j in range(3):
        H, r = g_load(B, j)
        B.after(b2, r)
        B.before_bar(r, b3)
        for c in range(3):
            bb += g_chain(B, H, "q", c, Q[j][2 * c:2 * c + 2], tag="q")
            bb += g_chain(B, H, "k", c, K[j][2 * c:2 * c + 2], tag="k")
            bb += g_chain(B, H, "v", c, V1[c][2 * j:2 * j + 2] if j < 2 else V2[c][0:2], tag="v")
    P2 = B.val("P2", 3, pin=P2_PIN[0])
    for j in range(4):
        Qj = Q[j] if j < 3 else QL
        S = [s_mfma(B, K[i] if i < 3 else KL, Qj, i == 3, f"{i}{j}") for i in range(4)]
        bb += [x[1] for x in S] + [x[2] for x in S]
        vals = [S[i][0][r] for i in range(3) for r in range(4)] + [S[3][0][0]]
        m, t = B.val("m"), B.val("t")
        B.valu("v_max3_f32 {0}, {1}, {2}, {3}", m, vals[0], vals[1], vals[2])
        for i in range(3, 13, 2):
            B.valu("v_max3_f32 {0}, {1}, {2}, {3}", m, m, vals[i], vals[i + 1])
        for w_ in (32, 16):
            B.valu("v_mov_b32 {0}, {1}", t, m)
            B.swap(w_, m, t)
            B.valu("v_max_f32 {0}, {1}, {2}", m, m, t)
        for v in vals:
            B.valu("v_sub_f32 {0}, {1}, {2}", v, v, m)
            B.valu("v_exp_f32 {0}, {1}", v, v, kind="trans")
        P1 = B.val("P1", 4)
        pack(B, P1[0:2], S[0][0])
        pack(B, P1[2:4], S[1][0])
        pack(B, P2[0:2], S[2][0])
        B.valu(CVT, P2[2], S[3][0][0], "0")
        if j == 3:
            ms, w = pv_left(B, P1, P2, V1, V2, guard=False)
            B.valu(f"v_add_u32 {{0}}, {TS}, {{0}}", vTv, rmw=True, tag="tv")
            B.before_bar([w], b3)
        else:
            ms, w = pv_tile(B, j, P1, P2, V1, V2, guard=False)
            B.before_bar(w, b3)
        bb += ms
    psteps, ords = proj(B, [(Xc[j], o_loader(B, j)) for j in range(3)])
    B.after(b3, ords)
    out_store(B, Xc, "s35")
    return finish(B, bb + [b3] + flat(psteps))


def safe_post():
    B = new_block("safe1")
    wo = [[wo_frag(B, c, k, 12) for k in range(6)] for c in range(3)]
    pl0, r0, pl1, r1 = left_proj(B, wo)
    return finish(B, flat(pl0 + pl1))


def finish(B, bb, **kw):
    lim = int(XOPT.get("lim", len(POOL["v"]) - 15))
    while True:
        B.schedule(bb, verbose=True, drain=int(XOPT.get('drain', 200)), limit=lim, holes=V2_PIN + P2_PIN, **kw)
        try:
            B.allocate(POOL, tries=40, verbose=2 if 'press' in XOPT else True)
            break
        except RuntimeError as e:
            lim -= 3
            if lim < 90:
                raise
    if XOPT.get("stalls") == B.name:
        print(" ".join(f"{i}:{tag}:{c}" for i, c, tag in B.stalls))
    if XOPT.get("dump") == B.name:
        for o in B.out:
            print(o.t, o.kind, o.tag or o.fmt)
    return B


def lane_table(dst, tmp, vt, vals):
    w = [sum(vals[4 * i + k] << (8 * k) for k in range(4)) for i in range(4)]
    L = [f"v_mov_b32 v{dst}, 0x{w[0]:08x}"]
    for i in range(1, 4):
        L += [f"v_cmp_le_u32 vcc, {4 * i}, v{vt}", f"v_mov_b32 v{tmp}, 0x{w[i]:08x}", f"v_cndmask_b32 v{dst}, v{dst}, v{tmp}, vcc"]
    L += [f"v_and_b32 v{tmp}, 3, v{vt}", f"v_lshlrev_b32 v{tmp}, 3, v{tmp}", f"v_bfe_u32 v{dst}, v{dst}, v{tmp}, 8"]
    return L


VL, VG, VT = 220, 221, 222
T0, T1, T2, T3 = 223, 224, 225, 226


def left_offsets(dst, src, add):
    t0, t1, t2 = T0, T1, T2
    return [f"v_add_u32 v{t0}, {add}, v{src}", f"v_lshlrev_b32 v{t0}, 5, v{t0}",
            f"v_add_u32 v{t1}, s30, v{t0}", f"v_cmp_gt_u32 s[60:61], s72, v{t1}",
            f"v_add_u32 v{t0}, s29, v{t0}", f"v_cmp_gt_u32 s[62:63], s73, v{t0}",
            f"v_mul_u32_u24 v{t1}, {MAGIC}, v{t0}", f"v_lshrrev_b32 v{t1}, {MSH}, v{t1}", "s_and_b64 s[60:61], s[60:61], s[62:63]",
            f"v_mul_u32_u24 v{t2}, 584, v{t1}", f"v_sub_u32 v{t2}, v{t0}, v{t2}",
            f"v_cmp_le_u32 vcc, 5256, v{t0}",
            f"v_and_b32 v{dst}, 7, v{t2}", f"v_lshl_add_u32 v{t1}, v{t1}, 3, v{dst}",
            f"v_mov_b32 v{dst}, 72", f"v_cndmask_b32 v{t1}, v{t1}, v{dst}, vcc",
            f"v_lshrrev_b32 v{dst}, 3, v{t2}", f"v_cndmask_b32 v{t2}, v{dst}, v{t2}, vcc",
            f"v_mul_u32_u24 v{t1}, {7 * ROWB}, v{t1}", f"v_mul_u32_u24 v{t2}, 2688, v{t2}", f"v_add_u32 v{dst}, v{t1}, v{t2}",
            f"v_cndmask_b32 v{dst}, 2.0, v{dst}, s[60:61]"]


PRE_TRW, PRE_TRO = 255, 254
PRE_WOA, PRE_WQ = [251, 252, 253], [243, 244, 245]
PRE_TK, PRE_TV = [249, 250], [247, 248]
PRE_TR, V_LEFT = 246, 242
PRE_LH, PRE_LV, PRE_LD = 239, 240, 241
PRE_DW = [236, 237, 238]
PRE_HSH = 235
PRE_PF = [232, 233, 234]
PRE_LA = 228
V_TAB = 227


def unit_src(i):
    m, u = divmod(i, 6)
    return (sWQ, 32 * u * 1152 + m * 384, PRE_WQ) if m < 3 else (sWO, 32 * u * 384, PRE_WOA)


def setup():
    r = lambda v: f"v{v.pin}"
    L = ["s_cmp_ge_u32 s2, 256", "s_cbranch_scc1 L_exit",
         "s_load_dwordx8 s[36:43], s[0:1], 0", "s_load_dwordx2 s[44:45], s[0:1], 32", "s_load_dwordx2 s[46:47], s[0:1], 48",
         "v_lshrrev_b32 v1, 6, v0", "s_and_b32 s60, s2, 7", "s_lshr_b32 s30, s2, 3", "v_readfirstlane_b32 s28, v1",
         f"v_and_b32 v{VL}, 63, v0", f"s_mul_i32 s29, s60, {PERX}", "s_add_u32 s29, s29, s30", f"s_mov_b32 s72, {PERX}", "s_mov_b32 s73, 5329",
         "s_mul_i32 s74, s28, 96", f"s_mul_i32 s81, s28, {STAGE_W}", f"s_add_u32 s81, s81, {L_STAGE}", "s_lshl_b32 s76, s28, 10"]
    L += left_offsets(V_TAB, VL, 0)
    L += [f"v_mul_u32_u24 v{T0}, 43, v{VL}", f"v_lshrrev_b32 v{T0}, 8, v{T0}", f"v_mul_u32_u24 v{T1}, 6, v{T0}", f"v_sub_u32 v{T1}, v{VL}, v{T1}",
          f"v_lshl_add_u32 v{T1}, v{T1}, 4, s74", f"v_cmp_gt_u32 vcc, 54, v{VL}",
          f"v_mul_u32_u24 v{T2}, 384, v{T0}", f"v_add_u32 v{T1}, v{T1}, v{T2}", f"v_cndmask_b32 {r(vDma)}, 2.0, v{T1}, vcc",
          f"v_mul_u32_u24 v{T0}, 11, v{T0}", f"v_lshrrev_b32 v{T0}, 5, v{T0}", f"v_mul_u32_u24 v{T0}, {ROWB - 3 * 384}, v{T0}",
          f"v_add_u32 v{T1}, {3 * ROWB + 3 * 384}, v{T1}", f"v_add_u32 v{T1}, v{T1}, v{T0}", f"v_cndmask_b32 v{V_LEFT}, 2.0, v{T1}, vcc",
          ]
    assert all((p * 11) >> 5 == p // 3 for p in range(9))
    L += [f"v_readlane_b32 s{60 + n}, v{V_TAB}, {n}" for n in range(3)]
    L += [f"v_lshlrev_b32 v{T0}, 6, v{VL}", f"v_cmp_gt_u32 vcc, 27, v{VL}", "s_lshl_b32 s69, s30, 2", "s_add_u32 s69, s69, s28",
          f"v_cndmask_b32 v{T1}, 2.0, v{T0}, vcc", f"v_cmp_gt_u32 vcc, 9, v{VL}", "s_mul_i32 s70, s69, 1728", "s_mul_i32 s71, s69, 576",
          f"v_cndmask_b32 v{T2}, 2.0, v{T0}, vcc"]
    left = lambda n, sr: [f"s_add_u32 m0, s81, {9216 + 864 * n}", "s_nop 0", f"buffer_load_dwordx4 v{V_LEFT}, {sX}, s{sr} offen{NT} lds"]
    L += ["s_waitcnt lgkmcnt(0)",
          "s_mov_b32 s16, s40", "s_mov_b32 s17, s41", "s_mov_b32 s18, 221184", "s_mov_b32 s19, 0x20000",
          f"buffer_load_dword v{PRE_PF[0]}, v{T1}, {sWQ}, s70 offen",
          "s_mov_b32 s24, s38", "s_mov_b32 s25, s39", "s_mov_b32 s26, 3456", "s_mov_b32 s27, 0x20000", f"s_add_u32 m0, s76, {L_H + 6144}",
          f"s_sub_u32 s4, s36, {SHIFT}", "s_subb_u32 s5, s37, 0", f"s_mov_b32 s6, {XBYTES + SHIFT}", "s_mov_b32 s7, 0x20000",
          f"buffer_load_dwordx4 {r(vDma)}, {sDW}, 0 offen lds"]
    for n in range(3):
        L += left(n, 60 + n)
    L += ["s_mov_b32 s20, s42", "s_mov_b32 s21, s43", "s_mov_b32 s22, 73728", "s_mov_b32 s23, 0x20000",
          f"buffer_load_dword v{PRE_PF[1]}, v{T2}, {sWO}, s71 offen"]
    if "nocpf" not in XOPT:
        L += ["s_getpc_b64 s[62:63]", "L_pc:", "s_mul_i32 s69, s69, 320", "s_min_u32 s69, s69, L_safe-L_pc-256", "s_add_u32 s62, s62, s69", "s_addc_u32 s63, s63, 0",
              f"v_min_u32 v{T1}, 4, v{VL}", f"v_lshlrev_b32 v{T1}, 6, v{T1}", f"global_load_dword v{PRE_PF[2]}, v{T1}, s[62:63]"]
    L += [f"v_readlane_b32 s{60 + n}, v{V_TAB}, {n}" for n in range(3, 9)]
    L += ["s_mov_b32 s8, s44", "s_mov_b32 s9, s45", f"s_mov_b32 s10, {XBYTES}", "s_mov_b32 s11, 0x20000",
          "s_mov_b32 s12, s46", "s_mov_b32 s13, s47", f"s_mov_b32 s14, {256 * WS_PER_WG}", "s_mov_b32 s15, 0x20000",
          "s_mov_b32 s24, s36", "s_mov_b32 s25, s37", f"s_mov_b32 s26, {XBYTES}"]
    for n in range(3, 9):
        L += left(n, 60 + n)
    L += [f"v_readlane_b32 s{36 + n - 9}, v{V_TAB}, {n}" for n in range(9, NWIN)]
    for i in range(3):
        L += [f"v_add_u32 v{T0}, {64 * i}, v{VL}", f"v_mul_u32_u24 v{T1}, 171, v{T0}", f"v_lshrrev_b32 v{T1}, 10, v{T1}",
              f"v_mul_u32_u24 v{T2}, 6, v{T1}", f"v_sub_u32 v{T2}, v{T0}, v{T2}", f"v_lshl_add_u32 v{T2}, v{T2}, 4, s74",
              f"v_subrev_u32 v{T2}, {1024 * i}, v{T2}",
              f"v_mul_u32_u24 v{T0}, 1152, v{T1}", f"v_add_u32 v{PRE_WQ[i]}, v{T0}, v{T2}",
              f"v_mul_u32_u24 v{T0}, 384, v{T1}", f"v_add_u32 v{PRE_WOA[i]}, v{T0}, v{T2}"]
    assert all((q * 171) >> 10 == q // 6 for q in range(192))
    L += ["s_mov_b64 s[48:49], 0x3f", "s_mov_b32 s50, 0", "s_mov_b32 s51, 0x3f0000",
          "s_mov_b32 s54, 0xffff", "s_mov_b32 s55, 0", "s_mov_b32 s56, -1", "s_mov_b32 s57, 0",
          "s_mul_i32 s58, s28, 7936", f"s_add_u32 s58, s58, {L_X}", "s_add_u32 s59, s58, 4320",
          f"s_mul_i32 s75, s2, {WS_PER_WG}", "s_mul_i32 s77, s28, 12288", "s_add_u32 s75, s75, s77", "s_add_u32 s77, s75, 4096", "s_add_u32 s78, s75, 8192",
          "s_mov_b32 s31, 0", "s_mov_b32 s79, 0x4310", "s_mov_b32 s80, 0x5276"]
    return L


def table_addr():
    r = lambda v: f"v{v.pin}"
    return [f"s_add_u32 s60, s74, {L_T}", f"v_mul_u32_u24 v{T0}, 24, v{VG}", f"v_add_u32 {r(vTk)}, s60, v{T0}",
            f"v_min_u32 v{T0}, 2, v{VG}", f"v_lshl_add_u32 v{T0}, v{T0}, 4, v{VT}", "s_add_u32 s60, s60, 384", f"v_lshl_add_u32 {r(vTv)}, v{T0}, 1, s60",
            f"v_cmp_gt_u32 vcc, {NWIN - 16}, v{VT}", f"v_mul_u32_u24 v{T0}, {TS}, v{VT}", f"v_add_u32 v{PRE_TK[0]}, {r(vTk)}, v{T0}",
            f"v_lshl_add_u32 v{T0}, v{VG}, 3, v{T0}", f"v_add_u32 v{PRE_TV[0]}, s60, v{T0}",
            f"v_mov_b32 v{T1}, 0x30000",
            f"v_add_u32 v{T2}, {16 * TS}, v{PRE_TK[0]}", f"v_cndmask_b32 v{PRE_TK[1]}, v{T1}, v{T2}, vcc",
            f"v_add_u32 v{T2}, {16 * TS}, v{PRE_TV[0]}", f"v_cndmask_b32 v{PRE_TV[1]}, v{T1}, v{T2}, vcc"]


def consts():
    r = lambda v: f"v{v.pin}"
    t0, t1, t2, t3 = T0, T1, T2, T3
    GH = 219
    L = [f"v_lshrrev_b32 v{VG}, 4, v{VL}", f"v_and_b32 v{VT}, 15, v{VL}",
         f"v_and_b32 v{t0}, 3, v{VL}", f"v_mul_u32_u24 {r(vIdx)}, 0x5555, v{t0}", f"v_mov_b32 {r(vGuard)}, 0",
         f"v_mov_b32 v{t0}, 0xff800000", f"v_cndmask_b32 {r(vCm)}, v{t0}, 0, {MG0}",
         f"v_mov_b32 v{ZREGS[0]}, 0", f"v_mov_b32 v{ZREGS[1]}, 0",
         f"v_lshrrev_b32 v{GH}, 1, v{VG}", f"v_and_b32 v{t3}, 1, v{VG}", f"v_cmp_eq_u32 s[94:95], 1, v{t3}", f"v_lshlrev_b32 v{t3}, 4, v{t3}",
         f"v_lshlrev_b32 v218, 4, v{GH}", f"v_lshl_add_u32 v218, v{t3}, 1, v218", "v_add_u32 v218, s74, v218"]
    for j in range(3):
        L += lane_table(t0, t1, VT, [y * 16 + x for (y, x) in TOK[j]])
        L += [f"v_lshrrev_b32 v{t1}, 4, v{t0}", f"v_and_b32 v{t0}, 15, v{t0}",
              f"v_mul_u32_u24 {r(vSt[j])}, {ROWB}, v{t1}", f"v_mul_u32_u24 v{t2}, 384, v{t0}"]
        if j == 2:
            L += [f"v_add3_u32 {r(vStX)}, {r(vSt[j])}, v{t2}, s74", f"v_lshl_add_u32 {r(vStX)}, v{VG}, 3, {r(vStX)}", f"v_add_u32 {r(vStX)}, 64, {r(vStX)}"]
        L += [f"v_add3_u32 {r(vSt[j])}, {r(vSt[j])}, v{t2}, v218",
              f"v_mul_u32_u24 v{t1}, 9, v{t1}", f"v_add_u32 v{t0}, v{t0}, v{t1}", f"v_mul_u32_u24 v{t0}, 96, v{t0}", f"v_add_u32 v{t0}, s58, v{t0}",
              f"v_mul_u32_u24 v{t1}, 96, v{GH}", f"v_add3_u32 {r(cH[j])}, v{t0}, v{t1}, v{t3}",
              f"v_mul_u32_u24 v{t1}, 864, v{GH}", f"v_add3_u32 {r(cV[j])}, v{t0}, v{t1}, v{t3}", f"v_add_u32 {r(cV[j])}, 192, {r(cV[j])}",
              f"v_lshl_add_u32 {r(cD[j])}, v{VG}, 3, v{t0}", f"v_add_u32 {r(cD[j])}, 1920, {r(cD[j])}"]
    L += [f"v_add_u32 v{t0}, 64, {r(vSt[0])}", f"v_add_u32 v{t1}, 32, {r(vSt[1])}", f"v_cndmask_b32 {r(vStM)}, v{t0}, v{t1}, s[94:95]"]
    L += [f"v_lshlrev_b32 {r(vRd)}, 4, v{VL}", f"v_add_u32 {r(vWr4)}, s76, {r(vRd)}",
          "s_lshr_b32 s60, s28, 1", "s_add_u32 s60, s60, 4", "s_lshl_b32 s60, s60, 10", "s_and_b32 s61, s28, 1", "s_lshl_b32 s61, s61, 3", "s_add_u32 s60, s60, s61",
          f"v_add_u32 {r(vWr2)}, s60, {r(vRd)}",
          f"s_mul_i32 s60, s28, {WO_W}", f"s_add_u32 s60, s60, {L_WO}", f"v_add_u32 {r(vWo)}, s60, {r(vRd)}",
          f"v_add_u32 v{t0}, v{t3}, v{VT}", f"v_lshlrev_b32 v{t1}, 10, v{GH}",
          f"v_lshl_add_u32 {r(vSw)}, v{t0}, 4, v{t1}", "s_lshl_b32 s60, s28, 2", f"v_add_u32 {r(vSw)}, s60, {r(vSw)}",
          f"v_lshl_add_u32 {r(vBw)}, v{t0}, 3, v{t1}", f"v_add_u32 {r(vBw)}, 768, {r(vBw)}",
          f"v_lshlrev_b32 {r(vBr)}, 3, v{VT}", f"v_mov_b32 v{t0}, 0x3f803f80"]
    L += [f"v_accvgpr_write_b32 a{ONES.pin + a}, v{t0}" for a in range(4)]
    L += table_addr()
    L += [f"v_mul_u32_u24 v{t0}, 864, v{VT}", "s_add_u32 s60, s81, 9216", f"v_add_u32 v{t0}, s60, v{t0}",
          f"v_mul_u32_u24 v{t1}, 96, v{GH}", f"v_add3_u32 v{PRE_LH}, v{t0}, v{t1}, v{t3}",
          f"v_mul_u32_u24 v{t1}, 288, v{GH}", f"v_add3_u32 v{PRE_LV}, v{t0}, v{t1}, v{t3}", f"v_add_u32 v{PRE_LV}, 192, v{PRE_LV}",
          f"v_lshl_add_u32 v{PRE_LD}, v{VG}, 3, v{t0}", f"v_add_u32 v{PRE_LD}, 768, v{PRE_LD}"]
    L += [f"s_add_u32 s60, s76, {L_H + 6144}", f"v_lshl_add_u32 v{t0}, v{VT}, 1, s60", f"v_lshlrev_b32 v{t1}, 2, v{VG}",
          f"v_lshrrev_b32 v{t2}, v{t1}, s79", f"v_and_b32 v{t2}, 15, v{t2}", f"v_mul_u32_u24 v{t2}, 96, v{t2}", f"v_add_u32 v{PRE_DW[0]}, v{t0}, v{t2}",
          f"v_lshrrev_b32 v{t2}, v{t1}, s80", f"v_and_b32 v{t2}, 15, v{t2}", f"v_mul_u32_u24 v{t2}, 96, v{t2}", f"v_add_u32 v{PRE_DW[1]}, v{t0}, v{t2}",
          f"v_add_u32 v{PRE_DW[2]}, {8 * 96}, v{t0}"]
    L += [f"v_lshrrev_b32 v{t0}, 2, v{VL}", f"v_mul_u32_u24 v{t0}, 96, v{t0}", f"v_and_b32 v{t1}, 3, v{VL}", f"v_lshl_add_u32 v{t0}, v{t1}, 3, v{t0}",
          f"v_add_u32 v{PRE_TR}, s81, v{t0}",
          f"s_mul_i32 s70, s28, {WO_W}", f"s_add_u32 s70, s70, {L_WO}", f"v_add_u32 v{PRE_TRW}, s70, v{t0}",
          "s_mul_i32 s71, s28, 3072", f"s_add_u32 s71, s71, {L_O}", f"v_add_u32 v{PRE_TRO}, s71, v{t0}"]
    L += ["s_mul_i32 s60, s28, 61", f"v_add_u32 v{t0}, s60, v{VL}", f"v_mul_u32_u24 v{t1}, 2428, v{t0}", f"v_lshrrev_b32 v{t1}, 16, v{t1}",
          f"v_mul_u32_u24 v{t1}, {ROWB - 27 * 128}, v{t1}", f"v_lshl_add_u32 v{t1}, v{t0}, 7, v{t1}",
          f"v_cmp_gt_u32 vcc, 61, v{VL}", f"v_cndmask_b32 v{t1}, 2.0, v{t1}, vcc", f"v_cmp_gt_u32 vcc, 243, v{t0}", f"v_cndmask_b32 {r(vPf)}, 2.0, v{t1}, vcc"]
    assert all((i * 2428) >> 16 == i // 27 for i in range(250))
    for a in range(2):
        L += left_offsets(PRE_LA + a, VT, 16 * a)
        L += [f"v_add_u32 v{PRE_LA + a}, {3 * ROWB + 3 * 384}, v{PRE_LA + a}", f"v_add_u32 v{PRE_LA + a}, v218, v{PRE_LA + a}"]
    L += [f"v_add_u32 v{t0}, 64, v{PRE_LA}", f"v_add_u32 v{t1}, 32, v{PRE_LA + 1}", f"v_cndmask_b32 v{PRE_LA + 2}, v{t0}, v{t1}, s[94:95]",
          f"v_mul_u32_u24 v{t0}, {TS}, v{VT}", f"v_lshl_add_u32 v{t0}, v{VG}, 3, v{t0}", f"v_add_u32 v{PRE_LA + 3}, {L_T + 768}, v{t0}"]
    L += [f"v_lshrrev_b32 v{t0}, 2, v{VT}"]
    for r_ in range(4):
        L.append(f"v_cmp_eq_u32 s[{82 + 2 * r_}:{83 + 2 * r_}], {r_}, v{t0}")
    L += [f"v_cmp_eq_u32 s[90:91], 3, v{VG}", f"v_cmp_eq_u32 s[92:93], v{t0}, v{VG}",
          f"v_and_b32 v{t0}, 2, v{VT}", f"v_cmp_eq_u32 s[96:97], 0, v{t0}", f"v_and_b32 v{PRE_HSH}, 1, v{VT}", f"v_lshlrev_b32 v{PRE_HSH}, 4, v{PRE_HSH}"]
    return L


def pre_first():
    B = new_block("first")
    li = lambda n, p, k=1: B.val(n, k, pin=p, live_in=True)
    lH, lV, lD = li("lH", PRE_LH), li("lV", PRE_LV), li("lD", PRE_LD)
    dwa = [li("dwa", p) for p in PRE_DW]
    uad = {p: li("uad", p) for p in PRE_WQ + PRE_WOA}
    tr, hsh, la = li("tr", PRE_TR), li("hsh", PRE_HSH), li("la", PRE_LA, 4)
    tk, tv = [li("tk", p) for p in PRE_TK], [li("tv", p) for p in PRE_TV]
    vleft = li("vleft", V_LEFT)
    pf = [li("pf", p) for p in PRE_PF]
    HB = int(XOPT.get("hb", 330))
    T0_ = int(XOPT.get("t0", 300))
    B.ext_vm(0)
    e_dw = B.ext_vm(0)
    e_left = [B.ext_vm(T0_ + HB * n, 27) for n in range(3)]
    e_pf = B.ext_vm(T0_ + HB * 2)
    if "nocpf" not in XOPT:
        e_pf = B.ext_vm(T0_ + HB * 2)
    for v in pf:
        B.dep(e_pf, B.valu("v_mov_b32 {0}, 0", v), 0, "vm")
    udma = {}
    e_left += [B.ext_vm(T0_ + HB * n, 27) for n in range(3, 9)]
    trw, tro = li("trw", PRE_TRW), li("tro", PRE_TRO)
    stash = lambda v, i, mn="buffer_store_dwordx4": B.vms(mn, v, vRd, sWS, *ws_slot(i), tag="stash", occ=90)
    stash(la, 6)
    dwr = []
    for c in range(3):
        dw = [B.val("dw") for i in range(3)]
        for i in range(3):
            dwr.append(B.dsr("ds_read_u16", dw[i], dwa[i], 32 * c, window=None, tag="dw"))
            B.dep(e_dw, dwr[-1], 0, "vm")
        one = B.val("one")
        B.valu("v_cndmask_b32 {0}, 0, 1.0, s[90:91]", one)
        B.valu("v_or_b32 {0}, {1}, {2}", dw[0], dw[0], one)
        for i, dstv in ((0, CW1[c]), (1, CW2[c])):
            for r_ in range(4):
                t = B.val("cwt")
                B.valu(f"v_cndmask_b32 {{0}}, 0, {{1}}, s[{82 + 2 * r_}:{83 + 2 * r_}]", t, dw[i])
                B.valu("v_accvgpr_write_b32 {0}, {1}", dstv[r_], t)
        B.valu("v_lshlrev_b32 {0}, {1}, {2}", dw[2], hsh, dw[2])
        B.valu("v_cndmask_b32 {0}, 0, {1}, s[92:93]", dw[2], dw[2])
        t = B.val("cwt")
        B.valu("v_cndmask_b32 {0}, 0, {1}, s[96:97]", t, dw[2])
        B.valu("v_accvgpr_write_b32 {0}, {1}", CWD[c][0], t)
        t = B.val("cwt")
        B.valu("v_cndmask_b32 {0}, {1}, 0, s[96:97]", t, dw[2])
        B.valu("v_accvgpr_write_b32 {0}, {1}", CWD[c][1], t)
    XL = X[1]
    cl_ = []
    for a in range(2):
        cl_.append(conv_tile(B, XL[a], a, window=None, addr=(lH, lV, lD, a * 16 * 864), row=288))
        for c in range(3):
            stash(XL[a][c], 3 * a + c)
    ba, bbar, bc, bd, be = B.bar("Ba"), B.bar("Bb"), B.bar("Bc"), B.bar("Bd"), B.bar("Be")
    swr = ln1(B, XL[:2], sb=L_H)
    B.before_bar(swr + dwr, ba)
    srd, bwr = ln2_head(B, sb=L_H)
    B.after(ba, srd)
    B.before_bar(srd, bbar)
    HL = []
    for a in range(2):
        rd, wr = ln2_tile(B, XL[a], a, 1 + a, sb=L_H)
        B.dep(bwr, rd, 4)
        B.before_bar([rd] + wr, bbar)
    host = flat(X[1])
    for a in range(2):
        h_, r_ = g_load(B, 1 + a, host=host)
        B.after(bbar, r_)
        B.before_bar(r_, bc)
        HL.append(h_)
    cv = [conv_tile(B, X[0][j], j) for j in range(3)]
    xr = flat([c[2] for c in cv])
    swr = ln1(B, X[0])
    B.before_bar(swr, bc)
    srd, bwr = ln2_head(B)
    B.after(bc, srd)
    B.before_bar(srd, bd)
    for j in range(3):
        rd, wr = ln2_tile(B, X[0][j], j, j)
        B.dep(bwr, rd, 4)
        B.before_bar([rd] + wr, bd)
    H0, r0 = g_load(B, 0)
    B.after(bd, r0)
    B.before_bar(r0, be)
    WOT = [[WOR[3 * k + c] if wo_slot(c, k) < 0 else B.val(f"wot{c}{k}", 4) for k in range(6)] for c in range(3)]
    urd = {}
    chain = [None]
    BONUS = 100000

    def link(first, last):
        if chain[0] is not None:
            B.dep(chain[0], first, 4)
        chain[0] = last

    def hbm(d, hb=HB):
        d.lat, d.hbm, d.bonus, d.lines = 1300, hb, BONUS, 27
        return d

    def row_left(n):
        s1 = B.salu(f"s_add_u32 m0, s81, {9216 + 864 * n}")
        d = hbm(B.dma(vleft, sX, f"s{36 + n - 9}", extra=NT, tag=f"left{n}"))
        B.dep(s1, d, 8)
        link(s1, d)
        e_left.append(d)

    x0 = {}

    def row_x0(r):
        if r == 0:
            calc = [B.salu(x, tag="win") for x in win_calc() + ["s_mov_b32 s33, s35"]]
            link(calc[0], calc[-1])
            x0["a"] = B.val("x0addr")
            cm = B.valu("v_cndmask_b32 {0}, {1}, 2.0, s[52:53]", x0["a"], vDma, tag="dmaaddr")
            cm.bonus = BONUS
            B.dep(calc[-1], cm, 4)
        s1 = B.salu("s_mov_b32 m0, " + ("s58" if r < 5 else "s59"))
        d = hbm(B.dma(x0["a"], sX, f"s{36 + r}", 864 * (r if r < 5 else r - 5), extra=NT, tag=f"x0row{r}"), int(XOPT.get("hb0", 220)))
        B.dep(s1, d, 8)
        link(s1, d)
        x0["last"] = d

    def unit_issue(i, m0txt, after):
        srd_, so, ar = unit_src(i)
        s1 = B.salu(m0txt)
        s2 = B.salu(f"s_mov_b32 s98, {so}")
        udma[i] = []
        for q in range(3):
            d = B.dma(uad[ar[q]], srd_, "s98", 1024 * q, tag=f"stage{i}")
            d.lat, d.bonus, d.lines = 450, BONUS, 32
            B.dep(s2 if q == 0 else udma[i][-1], d, 4)
            udma[i].append(d)
        for x in after:
            B.dep(x, udma[i][0], 0, "lgkm")
        link(s1, udma[i][-1])

    def unit_read(i, addr, base):
        m, u = divmod(i, 6)
        dst = W["qkv"[m]] if m < 3 else WOT
        urd[i] = []
        for b in range(2):
            wv, cc = divmod(2 * u + b, 3)
            k, off = (wv, 2 * cc) if cc < 2 else (4 + (wv >> 1), 2 * (wv & 1))
            for c in range(3):
                o = B.dsr("ds_read_b64_tr_b16", dst[c][k][off:off + 2], addr, base + b * 1536 + c * 32, window=None, occ=12, tag=f"unstage{i}")
                B.dep(udma[i][-1], o, 0, "vm")
                urd[i].append(o)

    for n in range(9, NWIN):
        row_left(n)
    for r_ in range(9):
        row_x0(r_)
    calc = [B.salu(x, tag="win") for x in win_calc() + ["s_mov_b32 s34, s35"]]
    link(calc[0], calc[-1])
    for i in range(18):
        unit_issue(i, f"s_add_u32 m0, s81, {3072 * (i % 9)}", [] if i < 3 else cl_[0][2] if i < 7 else cl_[1][2] if i < 9 else urd[i - 9])
        unit_read(i, tr, 3072 * (i % 9))
        for o in urd[i]:
            o.bonus = BONUS // 2
        B.before_bar(urd[i], be)
    B.after(e_left[15], cl_[0][2], 0, "vm")
    B.after(e_left[NWIN - 1], cl_[1][2], 0, "vm")
    for o in cl_[0][2] + cl_[1][2]:
        o.bonus = BONUS // 2
    B.after(x0["last"], xr, 0, "vm")
    cm, m0, dm1 = x_dma(B)
    B.dep(calc[-1], cm, 4)
    link(m0, dm1[-1])
    for x in xr:
        B.dep(x, dm1[0], 0, "lgkm")
    for d in dm1:
        hbm(d, int(XOPT.get("hb1", 130)))
    for u in range(6):
        unit_issue(18 + u, "s_mov_b32 m0, s71" if u == 0 else f"s_add_u32 m0, s70, {3072 * (u - 1)}", [])
        unit_read(18 + u, tro if u == 0 else trw, 0 if u == 0 else 3072 * (u - 1))
    B.dep(be, udma[18][0], 4)
    prevw = []
    for ks, us in (((1, 4), (19, 20)), ((2,), (21,)), ((3, 5), (22, 23))):
        rds = flat([urd[u] for u in us])
        for w_ in prevw:
            B.after(w_, rds)
        prevw = []
        for k in ks:
            for c in range(3):
                w_ = B.dsw("ds_write_b128", vWo, WOT[c][k], wo_slot(c, k) * 1024, tag="wWo")
                for x in rds:
                    B.dep(x, w_, 4)
                w_.bonus = int(XOPT.get("wob", 2000))
                prevw.append(w_)
    gl, twr = {}, []
    for m in "qkv":
        for a in range(2):
            res = V6(B, "res" + m)
            for c in range(3):
                gl[m, a, c] = g_chain(B, HL[a], m, c, res[2 * c:2 * c + 2], transposed=True, tag=f"L{m}{a}{c}")
                if m == "v":
                    twr.append(B.dsw("ds_write_b64", tv[a], res[2 * c:2 * c + 2], 32 * c, tag="wT"))
                else:
                    twr.append(B.dsw("ds_write_b64", tk[a], res[2 * c:2 * c + 2], (768 if m == "q" else 0) + 8 * c, tag="wT"))
            if m == "q":
                stash(res[0:4], 7 + 2 * a)
                stash(res[4:6], 8 + 2 * a, "buffer_store_dwordx2")
    B.after(be, twr)
    Q0, K0 = V6(B, "Q0"), V6(B, "K0")
    gq = [g_chain(B, H0, "q", c, Q0[2 * c:2 * c + 2], tag="q0") for c in range(3)]
    gk = [g_chain(B, H0, "k", c, K0[2 * c:2 * c + 2], tag="k0") for c in range(3)]
    cvb = lambda t: t[0] + flat(t[1])
    L_ = lambda m, a: flat([gl[m, a, c] for c in range(3)])
    bb = cvb(cl_[0]) + cvb(cl_[1]) + [ba, bbar] + cvb(cv[0]) + cvb(cv[1]) + cvb(cv[2])
    bb += L_("q", 0) + [bc] + L_("q", 1) + L_("k", 0) + [bd] + L_("k", 1) + flat(gq) + flat(gk) + [be] + L_("v", 0) + L_("v", 1)
    bb += body(B, 0, "first", dict(H0=H0, Q0=Q0, K0=K0, bd=bd, twr=twr, xdma=dm1[-1], vmlast=chain[0], ostage=urd[18], late=urd[19] + urd[20]))
    return finish(B, bb)


STAMP = ["s_waitcnt lgkmcnt(0)", "s_memtime s[100:101]", "s_waitcnt lgkmcnt(0)", "v_mov_b32 v1, s100", "buffer_store_dword v1, off, s[12:15], s99",
         "s_memrealtime s[100:101]", "s_waitcnt lgkmcnt(0)", "v_mov_b32 v1, s100", "buffer_store_dword v1, off, s[12:15], s99 offset:4",
         "s_addk_i32 s99, 8"]


def add_stamps(lines, every_bar):
    out = []
    st = ["  s_cselect_b32 s69, 1, 0"] + ["  " + x for x in STAMP] + ["  s_cmp_eq_u32 s69, 1"]
    bars = [i for i, l in enumerate(lines) if l.startswith("  s_barrier")]
    for i, l in enumerate(lines):
        out.append(l)
        if l.startswith("  s_barrier") and (every_bar or i == bars[-1]):
            out += st
    lines[:] = out


def build(comments=False, diag=0):
    ind = lambda L: ["  " + x for x in L]
    s0 = ind(setup())
    s1 = ind(consts())
    b0 = pre_first().lines(comments) + ind(["s_mov_b32 s70, 10"])

    def mk(name, p, mode):
        B = new_block(name)
        return finish(B, body(B, p, mode)).lines(comments)
    bodd = mk("odd", 1, "mid") + ind(["s_sub_u32 s70, s70, 1", "s_cmp_eq_u32 s70, 0", "s_cbranch_scc1 L_last"])
    bev = mk("even", 0, "mid") + ind(["s_branch L_loop"])
    bl = mk("last", 0, "last")
    if diag:
        k = s0.index("  s_waitcnt lgkmcnt(0)") + 1
        s0[k:k] = ind(["s_mov_b32 s12, s46", "s_mov_b32 s13, s47", f"s_mov_b32 s14, {256 * WS_PER_WG}", "s_mov_b32 s15, 0x20000",
                       f"s_mul_i32 s99, s2, {WS_PER_WG}", "s_lshl_b32 s69, s28, 11", "s_add_u32 s99, s99, s69", "s_add_u32 s99, s99, 49152"] + STAMP)
        add_stamps(b0, False)
        bl[0:0] = ind(STAMP)
        bl += ind(["s_waitcnt vmcnt(0)"] + STAMP)
    if "probe" in XOPT:
        keep = XOPT["probe"]
        isl = lambda l: l.startswith("  buffer_load") and " lds" in l
        if "l" not in keep:
            s0[:] = [l for l in s0 if not (isl(l) and f"v{V_LEFT}," in l)]
        if "x" not in keep:
            s0[:] = [l for l in s0 if not (isl(l) and f"v{T3}," in l)]
        if "w" not in keep:
            s0[:] = [l for l in s0 if not (isl(l) and "s98" in l)]
        s0 += ind(["s_waitcnt vmcnt(0)"] + STAMP)
        if "W" in keep:
            for i in range(3, 24):
                srd, so, ar = unit_src(i)
                s0 += ind([f"s_add_u32 m0, s81, {3072 * (i % 9)}", f"s_mov_b32 s98, {so}", "s_waitcnt vmcnt(30)"])
                for q in range(3):
                    s0.append(f"  buffer_load_dwordx4 v{ar[q]}, {srd}, s98 offen" + (f" offset:{1024 * q}" if q else "") + " lds")
            s0 += ind(["s_waitcnt vmcnt(0)"] + STAMP)
        if "X" in keep:
            for rep in range(3):
                s0 += ind(win_calc() + [f"v_cndmask_b32 v{T3}, v{vDma.pin}, 2.0, s[52:53]", "s_mov_b32 m0, s58"])
                for q in range(9):
                    if q == 5:
                        s0.append("  s_mov_b32 m0, s59")
                    o = 864 * (q if q < 5 else q - 5)
                    s0.append(f"  buffer_load_dwordx4 v{T3}, {sX}, s{36 + q} offen" + (f" offset:{o}" if o else "") + " lds")
                s0 += ind(["s_waitcnt vmcnt(0)"] + STAMP)
        s0 += ind(["s_waitcnt vmcnt(0)", "s_endpgm"])
    if "fine" in XOPT:
        import re
        lo, step = map(int, XOPT["fine"].split(":"))
        for b_ in (bodd, bev):
            mi = [i for i, l in enumerate(b_) if "mfma" in l]
            pos = []
            for n in range(8):
                m = lo + n * step
                while b_[mi[m] + 1].startswith("  s_") or "16x16x16" in b_[mi[m]]:
                    m += 1
                pos.append(mi[m])
            print("fine stamps at model times", [re.search(r"@(\d+)", b_[i]).group(1) for i in pos])
            for n in reversed(range(8)):
                b_.insert(pos[n] + 1, f"  s_memtime s[{82 + 2 * n}:{83 + 2 * n}]")
            k = max(i for i, l in enumerate(b_) if l.startswith("  s_barrier")) + 1
            dump = ["s_waitcnt lgkmcnt(0)"]
            for n in range(8):
                dump += [f"v_mov_b32 v1, s{82 + 2 * n}", f"buffer_store_dword v1, off, s[12:15], s99 offset:{8 * n}"]
            b_[k:k] = ind(dump + ["s_addk_i32 s99, 64"])
    if "enc" in XOPT:
        mode, k_ = XOPT["enc"].split(":")
        k = s0.index("  s_waitcnt lgkmcnt(0)")
        s0[k:k] = ind(["s_memrealtime s[100:101]", "s_memtime s[66:67]"])
        s0[k + 3:k + 3] = ind(["s_mov_b32 s99, s100", "s_mov_b32 s3, s66"])
        if mode in ("rt", "cy"):
            st_ = ind(["s_waitcnt lgkmcnt(0)", "s_memrealtime s[100:101]" if mode == "rt" else "s_memtime s[100:101]", "s_waitcnt lgkmcnt(0)"])
            if k_ == "end":
                bl += st_
            else:
                bars = [i for i, l in enumerate(b0) if l.startswith("  s_barrier")]
                b0[bars[int(k_)] + 1:bars[int(k_)] + 1] = st_
            if mode == "rt":
                bl += ind(["s_sub_u32 s101, s100, s99"])
            else:
                bl += ind(["s_sub_u32 s101, s100, s3", "s_mul_i32 s101, s101, 6554", "s_lshr_b32 s101, s101, 16"])
            if k_ != "end":
                bl += ind(["s_lshl_b32 s101, s101, 2"])
            bl += ind(["s_add_u32 s101, s101, 15000"])
        else:
            bl += ind(["s_mov_b32 s101, 15000"])
        bl += ["L_spin:"] + ind(["s_memrealtime s[60:61]", "s_waitcnt lgkmcnt(0)", "s_sub_u32 s60, s60, s99", "s_cmp_lt_u32 s60, s101", "s_cbranch_scc1 L_spin"])
    for b_ in (bodd, bev):
        if "nostore" in XOPT:
            b_[:] = [l for l in b_ if not l.startswith("  buffer_store_dwordx")]
        if "idle" in XOPT:
            k = max(i for i, l in enumerate(b_) if l.startswith("  s_barrier"))
            b_[k:k] = ["  s_nop 15"] * (int(XOPT["idle"]) // 64)
        if "kill" in XOPT:
            pat = XOPT["kill"].split(",")
            b_[:] = [("  s_nop 0" if any(p_ in l for p_ in pat) else l) for l in b_]
        if "nodma" in XOPT:
            b_[:] = [l for l in b_ if not (l.startswith("  buffer_load") and " lds" in l)]
    chk = ind([f"v_cmp_nge_f32 vcc, {f32(2.0 ** int(XOPT.get('thr', 80)))}, v{vGuard.pin}", "s_nop 4", "s_cmp_eq_u64 vcc, 0", "s_cbranch_scc1 L_exit"])
    if diag or "enc" in XOPT:
        chk = ind(["s_branch L_exit"])
    sa = ind(["s_waitcnt vmcnt(0)", "s_barrier", f"v_mbcnt_lo_u32_b32 v{VL}, -1, 0", f"v_mbcnt_hi_u32_b32 v{VL}, -1, v{VL}",
              f"v_lshrrev_b32 v{VG}, 4, v{VL}", f"v_and_b32 v{VT}, 15, v{VL}"] + table_addr() + ["s_mov_b32 s31, 0"])
    sa += safe_prologue().lines(comments)
    sb = safe_body().lines(comments) + ind([f"s_cmp_lt_u32 s31, {NWIN}", "s_cbranch_scc1 L_safe_loop"])
    sc = safe_post().lines(comments)
    paths = [[s0, s1, b0, bodd, bev, bodd, bl, chk, sa, sb, sb, sc]]
    n = check.fix_hazards(paths)
    print("inserted nops:", n)
    for p_ in paths:
        errs = check.check_waits(p_)
        assert not errs, "\n".join(errs[:20])
    ref = open(os.path.join(os.path.dirname(os.path.abspath(__file__)), "..", NAME + ".s.ref")).read()
    head = ref[:ref.index("; Override launch")]
    out = [head.rstrip(), f"; @launch grid=(256,1,1) block=(256,1,1) lds={LDS_BYTES}",
           "; generated by gen/kernel.py", '.amdgcn_target "amdgcn-amd-amdhsa--gfx950"', ".text", f".globl {NAME}_kernel", ".p2align 8",
           f".type {NAME}_kernel,@function", f"{NAME}_kernel:"]
    out += s0 + s1 + b0 + [".p2align 6", "L_loop:"] + bodd + bev + ["L_last:"] + bl + chk + ["L_safe:"] + sa + ["L_safe_loop:"] + sb + sc
    out += ["L_exit:", "  s_endpgm", '.section .rodata,"a"', ".p2align 6", f".amdhsa_kernel {NAME}_kernel",
            "  .amdhsa_next_free_vgpr 512", "  .amdhsa_next_free_sgpr 102", "  .amdhsa_accum_offset 256",
            "  .amdhsa_group_segment_fixed_size 0", "  .amdhsa_kernarg_size 56", "  .amdhsa_user_sgpr_count 2",
            "  .amdhsa_user_sgpr_kernarg_segment_ptr 1", "  .amdhsa_system_sgpr_workgroup_id_x 1", ".end_amdhsa_kernel", ""]
    return "\n".join(out)


if __name__ == "__main__":
    dst = sys.argv[1] if len(sys.argv) > 1 else os.path.join(os.path.dirname(os.path.abspath(__file__)), "..", NAME + ".s")
    txt = build(comments="-c" in sys.argv, diag=2 if "-d2" in sys.argv else (1 if "-d" in sys.argv else 0))
    open(dst, "w").write(txt)
    print("wrote", dst, len(txt), "bytes")
```
